```python
import torch

def _softmax(x, axis=-1):
    return torch.softmax(x, dim=axis)
def _gelu(x):
    return torch.nn.functional.gelu(x, approximate="tanh")
def _silu(x):
    return torch.nn.functional.silu(x)
def _sigmoid(x):
    return torch.sigmoid(x)
def _layernorm(x, axis=-1, eps=1e-5):
    m = x.mean(dim=axis, keepdim=True)
    v = x.var(dim=axis, keepdim=True, unbiased=False)
    return (x - m) / torch.sqrt(v + eps)
def _scatter_add(tgt, idx, src, axis=0):
    return tgt.clone().index_add_(axis, idx, src)
def _segment_sum(src, seg, n):
    out = torch.zeros((n,) + src.shape[1:], dtype=src.dtype)
    return out.index_add_(0, seg, src)
def _pad(x, pw):
    flat = tuple(v for pair in reversed(pw) for v in pair)
    return torch.nn.functional.pad(x, flat)

kernel_name = 'recurrent_scan__mha_block__glu_gated_swiglu__prompt'

def setup_inputs():

    _w = (lambda a: (lambda t: t.to(torch.bfloat16) if t.is_floating_point() else t)(torch.as_tensor(a)))
    def _A_setup():
        B, S, D, H = 1, 2048, 576, 32
        return {
            "x": _w((lambda *s: torch.randn(*s, dtype=torch.bfloat16) * 0.05)(B, S, D)),
            "wqkv": _w((lambda *s: torch.randn(*s, dtype=torch.bfloat16) * 0.2)(D, 3 * D)),
            "wo": _w((lambda *s: torch.randn(*s, dtype=torch.bfloat16) * 0.2)(D, D)),
        }
    _A_in = _A_setup()

    def _B_setup():
        B, S, D, F = 1, 2048, 576, 4608
        return {
            "x": _w((lambda *s: torch.randn(*s, dtype=torch.bfloat16) * 0.05)(B, S, D)),
            "w1": _w((lambda *s: torch.randn(*s, dtype=torch.bfloat16) * 0.1)(D, F) * (2.0 / D) ** 0.5),
            "w3": _w((lambda *s: torch.randn(*s, dtype=torch.bfloat16) * 0.1)(D, F) * (2.0 / D) ** 0.5),
            "w2": _w((lambda *s: torch.randn(*s, dtype=torch.bfloat16) * 0.1)(F, D) * (2.0 / F) ** 0.5),
        }
    _B_in = _B_setup()

    return {
        "A_x": _A_in["x"],
        "A_wqkv": _A_in["wqkv"],
        "A_wo": _A_in["wo"],
        "B_x": _B_in["x"],
        "B_w1": _B_in["w1"],
        "B_w3": _B_in["w3"],
        "B_w2": _B_in["w2"],
    }

def reference(A_x, A_wqkv, A_wo, B_x, B_w1, B_w3, B_w2):
    def _A_ref(x, wqkv, wo):
        B, S, D = x.shape
        H = 32
        Dh = D // H
        qkv = (lambda x, *d: x.permute(*d))((x @ wqkv).reshape(B, S, 3, H, Dh), 2, 0, 3, 1, 4)
        q, k, v = qkv[0], qkv[1], qkv[2]
        scores = torch.einsum("bhqd,bhkd->bhqk", q, k) * (Dh ** -0.5)
        p = _softmax(scores, axis=-1)
        o = torch.einsum("bhqk,bhkd->bhqd", p, v)
        return (lambda x, *d: x.permute(*d))(o, 0, 2, 1, 3).reshape(B, S, D) @ wo

    def _B_ref(x, w1, w3, w2):
        gate = torch.einsum("bsd,df->bsf", x, w1)
        up = torch.einsum("bsd,df->bsf", x, w3)
        h = _silu(gate) * up
        out = torch.einsum("bsf,fd->bsd", h, w2)
        return out

    x = A_x
    xn = _layernorm(x, axis=-1)
    s = _A_ref(xn, A_wqkv, A_wo)
    g = _silu(_B_ref(xn, B_w1, B_w3, B_w2))
    return x + s * g
```

```python
from lib import *
import struct

SLOT = 36864
REG = 18432
LOG2E = 1.4426950408889634

def f2h(x):
    return hex(struct.unpack("<I", struct.pack("<f", x))[0])

def perm_pi(a, dst, src, t0):
    a(f"v_and_b32 v{dst}, 0x13, v{src}")
    a(f"v_and_b32 v{t0}, 4, v{src}")
    a(f"v_lshl_or_b32 v{dst}, v{t0}, 1, v{dst}")
    a(f"v_and_b32 v{t0}, 8, v{src}")
    a(f"v_lshrrev_b32 v{t0}, 1, v{t0}")
    a(f"v_or_b32 v{dst}, v{dst}, v{t0}")

def tr_lane_base128(a, dst, lane, t0, t1):
    a(f"v_lshrrev_b32 v{t0}, 5, v{lane}")
    a(f"v_lshlrev_b32 v{t0}, 3, v{t0}")
    a(f"v_bfe_u32 v{t1}, v{lane}, 2, 2")
    a(f"v_add_u32 v{t0}, v{t0}, v{t1}")
    a(f"v_lshlrev_b32 v{dst}, 7, v{t0}")
    a(f"v_bfe_u32 v{t0}, v{lane}, 3, 1")
    a(f"v_lshl_add_u32 v{dst}, v{t0}, 6, v{dst}")
    a(f"v_bfe_u32 v{t0}, v{lane}, 4, 1")
    a(f"v_lshl_add_u32 v{dst}, v{t0}, 5, v{dst}")
    a(f"v_and_b32 v{t0}, 1, v{lane}")
    a(f"v_lshl_add_u32 v{dst}, v{t0}, 4, v{dst}")
    a(f"v_bfe_u32 v{t0}, v{lane}, 1, 1")
    a(f"v_lshl_add_u32 v{dst}, v{t0}, 3, v{dst}")

def dma_lane_offset128(a, dst, lane, stride_sgpr, t0, t1):
    a(f"v_lshrrev_b32 v{t0}, 3, v{lane}")
    a(f"v_mul_lo_u32 v{dst}, v{t0}, s{stride_sgpr}")
    a(f"v_bfe_u32 v{t0}, v{lane}, 4, 1")
    a(f"v_lshlrev_b32 v{t0}, 2, v{t0}")
    a(f"v_and_b32 v{t1}, 7, v{lane}")
    a(f"v_xor_b32 v{t0}, v{t0}, v{t1}")
    a(f"v_lshl_add_u32 v{dst}, v{t0}, 4, v{dst}")

def stage_rows_via_lds(a, XB, srd, s_rowbyte0, rowbytes, s_lds, v_lane, v_pi, v_hi, tmpv, s_tmp, nchunks, after_issue, per_chunk, npf):
    pass

def emit_stamp_store(a, s0, n):
    a("s_waitcnt lgkmcnt(0)")
    a("s_lshl_b32 s46, s2, 3")
    a("s_add_u32 s46, s46, s3")
    a("s_lshl_b32 s46, s46, 6")
    a(f"s_add_u32 s56, s12, {hex(WS_STAMP)}")
    a("s_addc_u32 s57, s13, 0")
    a("s_add_u32 s56, s56, s46")
    a("s_addc_u32 s57, s57, 0")
    a("v_mov_b32 v1, 0")
    for i in range(n):
        a(f"v_mov_b32 v2, s{s0+2*i}")
        a(f"v_mov_b32 v3, s{s0+2*i+1}")
        a(f"global_store_dwordx2 v1, v[2:3], s[56:57] offset:{8*i}")
        a("s_nop 1")
    a("s_waitcnt vmcnt(0)")

def gen_k1(name="k1_kernel", D=6, stamp=False, dbg="", PD=6):
    R = 8
    a = Asm()
    kernel_header(a, name)
    END = name + "_end"
    S_WAVE, S_G, S_RB = 3, 14, 15
    SRD_X, SRD_W, SRD_WQ, SRD_H, SRD_QK, SRD_VT = 16, 20, 24, 28, 32, 36
    S_NQUAD, S_Q0, S_NDT, S_DT0 = 40, 41, 42, 43
    S_SOFF, S_LDS, S_CNT, S_TMP, S_TMP2 = 44, 45, 46, 47, 48
    S_HOFF, S_TILE, S_EPMUL, S_EPOFF = 49, 50, 51, 52
    SRD_EP = 56
    S_ST = 60
    V_LANE, V_N, V_HI, V_T0, V_T1 = 1, 2, 3, 4, 5
    V_LB, V_RA = 6, 8
    V_HADDR, V_QKADDR, V_VTADDR, V_EPADDR, V_PI = 11, 12, 13, 14, 15
    XB, ACC, WR = 16, 160, 224
    TMP = WR + 4 * D
    assert TMP + 8 <= 256
    def stamp_at(i):
        if stamp: a(f"s_memtime s[{S_ST+2*i}:{S_ST+2*i+1}]")
    a("s_cmp_ge_u32 s2, 256")
    a(f"s_cbranch_scc1 {END}")
    a("s_load_dwordx4 s[4:7], s[0:1], 0")
    a("s_load_dwordx4 s[8:11], s[0:1], 32")
    a("s_load_dwordx2 s[12:13], s[0:1], 72")
    stamp_at(0)
    if stamp: a(f"s_memrealtime s[{S_ST+12}:{S_ST+13}]")
    a("v_lshrrev_b32 v1, 6, v0")
    a("s_and_b32 s14, s2, 7")
    a(f"v_readfirstlane_b32 s{S_WAVE}, v1")
    a("s_lshr_b32 s15, s2, 3")
    a(f"s_lshr_b32 s{S_TMP}, s14, 1")
    a(f"s_lshl_b32 s{S_TMP}, s{S_TMP}, 2")
    a(f"s_lshr_b32 s{S_TMP2}, s15, 3")
    a(f"s_add_u32 s{S_TMP}, s{S_TMP}, s{S_TMP2}")
    a("s_and_b32 s14, s14, 1")
    a("s_lshl_b32 s14, s14, 3")
    a("s_and_b32 s15, s15, 7")
    a(f"s_add_u32 s{S_RB}, s14, s15")
    a(f"s_mov_b32 s{S_G}, s{S_TMP}")
    a(f"v_and_b32 v{V_LANE}, 63, v0")
    a(f"s_lshr_b32 s{S_TMP}, s{S_G}, 1")
    a(f"s_and_b32 s{S_TMP2}, s{S_G}, 1")
    a(f"s_sub_u32 s{S_NQUAD}, 5, s{S_TMP2}")
    a(f"s_mul_i32 s{S_Q0}, s{S_TMP}, 9")
    a(f"s_mul_i32 s{S_CNT}, s{S_TMP2}, 5")
    a(f"s_add_u32 s{S_Q0}, s{S_Q0}, s{S_CNT}")
    a(f"s_min_u32 s{S_CNT}, s{S_TMP}, 3")
    a(f"s_mul_i32 s{S_DT0}, s{S_TMP}, 3")
    a(f"s_add_u32 s{S_DT0}, s{S_DT0}, s{S_CNT}")
    a(f"s_add_u32 s{S_DT0}, s{S_DT0}, s{S_TMP2}")
    a(f"s_cmp_lt_u32 s{S_TMP}, 3")
    a(f"s_cselect_b32 s{S_NDT}, 3, 2")
    a(f"s_cmp_eq_u32 s{S_TMP2}, 0")
    a(f"s_cselect_b32 s{S_NDT}, 1, s{S_NDT}")
    a("s_waitcnt lgkmcnt(0)")
    a(f"s_cmp_ge_u32 s{S_WAVE}, 4")
    a(f"s_cbranch_scc1 {name}_loader")

    make_srd(a, SRD_X, 4, 5, 0, 2048 * 1152)
    a(f"v_and_b32 v{V_N}, 31, v{V_LANE}")
    a(f"v_lshrrev_b32 v{V_HI}, 5, v{V_LANE}")
    perm_pi(a, V_PI, V_N, V_T1)
    a(f"s_lshl_b32 s{S_TMP}, s{S_RB}, 2")
    a(f"s_add_u32 s{S_TMP}, s{S_TMP}, s{S_WAVE}")
    a(f"s_lshl_b32 s{S_TMP2}, s{S_TMP}, 5")
    V_DA, V_DB = 6, 7
    a(f"v_lshrrev_b32 v{V_DA}, 3, v{V_LANE}")
    a(f"s_movk_i32 s{S_SOFF}, 1152")
    a(f"v_mul_lo_u32 v{V_DA}, v{V_DA}, s{S_SOFF}")
    a(f"v_lshrrev_b32 v8, 4, v{V_LANE}")
    a(f"v_and_b32 v9, 7, v{V_LANE}")
    a(f"v_xor_b32 v8, v8, v9")
    a(f"v_xor_b32 v9, 4, v8")
    a(f"v_lshl_add_u32 v{V_DB}, v9, 4, v{V_DA}")
    a(f"v_lshl_add_u32 v{V_DA}, v8, 4, v{V_DA}")
    a(f"s_mul_i32 s{S_SOFF}, s{S_TMP2}, 1152")
    a(f"s_mul_i32 s{S_LDS}, s{S_WAVE}, {SLOT}")
    a(f"s_mov_b32 m0, s{S_LDS}")
    for c in range(9):
        for i in range(4):
            a(f"s_add_u32 s{S_CNT}, s{S_SOFF}, {c*128 + i*8*1152}")
            a(f"buffer_load_dwordx4 v{V_DA if i % 2 == 0 else V_DB}, s[{SRD_X}:{SRD_X+3}], s{S_CNT} offen lds")
            a(f"s_add_u32 m0, m0, 1024")
    stamp_at(1)
    make_srd(a, SRD_H, 12, 13, WS_H, SZ_H)
    make_srd(a, SRD_QK, 12, 13, WS_Q, 2 * SZ_Q)
    make_srd(a, SRD_VT, 12, 13, WS_VT, SZ_VT)
    a(f"v_add_u32 v{V_T1}, s{S_TMP2}, v{V_PI}")
    a(f"v_mul_u32_u24 v{V_QKADDR}, 48, v{V_T1}")
    a(f"v_lshl_add_u32 v{V_QKADDR}, v{V_HI}, 4, v{V_QKADDR}")
    a(f"v_lshlrev_b32 v10, 3, v{V_HI}")
    a(f"v_lshlrev_b32 v{V_VTADDR}, 12, v{V_PI}")
    a(f"v_lshl_add_u32 v{V_VTADDR}, v{V_HI}, 4, v{V_VTADDR}")
    a(f"s_lshl_b32 s{S_SOFF}, s{S_TMP2}, 1")
    a(f"v_add_u32 v{V_VTADDR}, s{S_SOFF}, v{V_VTADDR}")
    a(f"v_lshlrev_b32 v{V_HADDR}, 4, v{V_LANE}")
    a(f"s_mul_i32 s{S_HOFF}, s{S_TMP}, {288*1024}")
    a(f"s_lshl_b32 s{S_SOFF}, s{S_Q0}, 12")
    a(f"s_add_u32 s{S_HOFF}, s{S_HOFF}, s{S_SOFF}")
    tr_lane_base128(a, V_LB, V_LANE, V_T0, V_T1)
    a(f"v_xor_b32 v{V_LB+1}, 64, v{V_LB}")
    SUM, SQ, ONES = ACC, ACC + 2, ACC + 4
    for i in range(4): a(f"v_mov_b32 v{SUM+i}, 0")
    a(f"v_mov_b32 v{ONES}, 0x3f803f80")
    XA = ACC + 8
    a(f"v_lshrrev_b32 v{XA+4}, 1, v{V_PI}")
    a(f"v_and_b32 v{XA+4}, 7, v{XA+4}")
    a(f"v_xor_b32 v{XA+4}, v{XA+4}, v{V_HI}")
    a(f"v_lshlrev_b32 v{XA+5}, 7, v{V_PI}")
    a(f"v_add_u32 v{XA+5}, s{S_LDS}, v{XA+5}")
    for sub in range(4):
        a(f"v_xor_b32 v{XA+sub}, {2*sub}, v{XA+4}")
        a(f"v_lshl_add_u32 v{XA+sub}, v{XA+sub}, 4, v{XA+5}")
    for c in range(9):
        a(f"s_waitcnt vmcnt({32 - 4*c})")
        for sub in range(4):
            r = XB + 16 * c + 4 * sub
            a(f"ds_read_b128 v[{r}:{r+3}], v{XA+sub} offset:{c*4096}")
        if c > 0:
            a("s_waitcnt lgkmcnt(4)")
            for r in range(XB + 16 * (c - 1), XB + 16 * c):
                a(f"v_dot2c_f32_bf16 v{SUM + (r & 1)}, v{r}, v{ONES}")
                a(f"v_dot2c_f32_bf16 v{SQ + (r & 1)}, v{r}, v{r}")
    a("s_waitcnt lgkmcnt(0)")
    a("s_barrier")
    for r in range(XB + 128, XB + 144):
        a(f"v_dot2c_f32_bf16 v{SUM + (r & 1)}, v{r}, v{ONES}")
        a(f"v_dot2c_f32_bf16 v{SQ + (r & 1)}, v{r}, v{r}")
    stamp_at(2)
    a("s_nop 2")
    a(f"v_add_f32 v{SUM}, v{SUM}, v{SUM+1}")
    a(f"v_add_f32 v{SQ}, v{SQ}, v{SQ+1}")
    a("s_nop 0")
    a(f"v_mov_b32 v{SUM+1}, v{SUM}")
    a(f"v_mov_b32 v{SQ+1}, v{SQ}")
    a("s_nop 1")
    a(f"v_permlane32_swap_b32 v{SUM}, v{SUM+1}")
    a(f"v_permlane32_swap_b32 v{SQ}, v{SQ+1}")
    a("s_nop 1")
    a(f"v_add_f32 v{SUM}, v{SUM}, v{SUM+1}")
    a(f"v_add_f32 v{SQ}, v{SQ}, v{SQ+1}")
    a(f"v_mul_f32 v{SUM}, {f2h(1.0/576)}, v{SUM}")
    a(f"v_mul_f32 v{SQ}, {f2h(1.0/576)}, v{SQ}")
    a(f"v_fma_f32 v{SQ}, -v{SUM}, v{SUM}, v{SQ}")
    a(f"v_max_f32 v{SQ}, 0, v{SQ}")
    a(f"v_add_f32 v{SQ}, {f2h(1e-5)}, v{SQ}")
    a(f"v_rsq_f32 v{SQ}, v{SQ}")
    a("s_nop 0")
    RR, CC = ACC + 6, ACC + 8
    a(f"v_mul_f32 v{RR}, {f2h(LOG2E)}, v{SQ}")
    a(f"v_mov_b32 v{RR+1}, v{RR}")
    a(f"v_mul_f32 v{CC}, v{SUM}, v{RR}")
    a(f"v_sub_f32 v{CC}, 0, v{CC}")
    a(f"v_mov_b32 v{CC+1}, v{CC}")
    T = ACC + 16
    for r in range(XB, XB + 144, 2):
        for j in range(2):
            a(f"v_lshlrev_b32 v{T+2*j}, 16, v{r+j}")
            a(f"v_and_b32 v{T+2*j+1}, 0xffff0000, v{r+j}")
        for j in range(2):
            a(f"v_pk_fma_f32 v[{T+2*j}:{T+2*j+1}], v[{T+2*j}:{T+2*j+1}], v[{RR}:{RR+1}], v[{CC}:{CC+1}]")
        for j in range(2):
            a(f"v_cvt_pk_bf16_f32 v{r+j}, v{T+2*j}, v{T+2*j+1}")
    stamp_at(3)

    def base_reg(slot): return V_RA + (slot & 1)
    def set_base(slot, t): return f"v_add_u32 v{base_reg(slot)}, {slot*SLOT}, v{V_LB+t}"
    def frag_reads(i, slot):
        r = WR + 4 * (i % D)
        j = i % 18
        off = (j & 1) * REG + (j >> 1) * 2048
        return [f"ds_read_b64_tr_b16 v[{r}:{r+1}], v{base_reg(slot)} offset:{off}",
                f"ds_read_b64_tr_b16 v[{r+2}:{r+3}], v{base_reg(slot)} offset:{off+512}"]
    def silu_epilogue(st):
        g, u = st, st + 16
        L = []
        for r in range(0, 16, 2):
            t = TMP + 2 * ((r // 2) % 4)
            L.append(f"v_exp_f32 v{t}, -v{g+r}")
            L.append(f"v_exp_f32 v{t+1}, -v{g+r+1}")
            L.append(f"v_mul_f32 v{u+r}, v{g+r}, v{u+r}")
            L.append(f"v_mul_f32 v{u+r+1}, v{g+r+1}, v{u+r+1}")
            L.append(f"v_add_f32 v{t}, 1.0, v{t}")
            L.append(f"v_add_f32 v{t+1}, 1.0, v{t+1}")
            L.append(f"v_rcp_f32 v{t}, v{t}")
            L.append(f"v_rcp_f32 v{t+1}, v{t+1}")
            if r > 0:
                L.append(f"v_cvt_pk_bf16_f32 v{u + r//2 - 1}, v{g+r-2}, v{g+r-1}")
            else:
                L.append("s_nop 0")
            L.append(f"v_mul_f32 v{g+r}, v{u+r}, v{t}")
            L.append(f"v_mul_f32 v{g+r+1}, v{u+r+1}, v{t+1}")
            if r == 8:
                L.append(f"buffer_store_dwordx4 v[{u}:{u+3}], v{V_HADDR}, s[{SRD_H}:{SRD_H+3}], s{S_HOFF} offen")
        L.append(f"v_cvt_pk_bf16_f32 v{u+7}, v{g+14}, v{g+15}")
        L.append(f"buffer_store_dwordx4 v[{u+4}:{u+7}], v{V_HADDR}, s[{SRD_H}:{SRD_H+3}], s{S_HOFF} offen offset:1024")
        L.append(f"s_add_u32 s{S_HOFF}, s{S_HOFF}, 2048")
        return L
    S_MAGIC, S_HMUL, S_C0 = 53, 54, 55
    def v_epilogue(acc):
        L = []
        for r in range(0, 16, 2):
            L.append(f"v_mul_f32 v{acc+r}, s{S_EPMUL}, v{acc+r}")
            L.append(f"v_mul_f32 v{acc+r+1}, s{S_EPMUL}, v{acc+r+1}")
            L.append(f"v_cvt_pk_bf16_f32 v{acc + r//2}, v{acc+r}, v{acc+r+1}")
        L.append(f"buffer_store_dwordx4 v[{acc}:{acc+3}], v{V_VTADDR}, s[{SRD_VT}:{SRD_VT+3}], s{S_EPOFF} offen")
        L.append(f"buffer_store_dwordx4 v[{acc+4}:{acc+7}], v{V_VTADDR}, s[{SRD_VT}:{SRD_VT+3}], s{S_EPOFF} offen offset:32")
        return L
    def qk_epilogue(acc):
        L = []
        L.append(f"v_add_u32 v{TMP+6}, s{S_C0}, v10")
        L.append(f"v_lshl_add_u32 v{TMP+7}, s{S_C0}, 1, v{V_QKADDR}")
        for r in range(0, 16, 2):
            j, p = r // 8, (r % 8) // 2
            t = TMP + 2 * ((r // 2) % 3)
            L.append(f"v_mul_f32 v{acc+r}, s{S_EPMUL}, v{acc+r}")
            L.append(f"v_mul_f32 v{acc+r+1}, s{S_EPMUL}, v{acc+r+1}")
            L.append(f"v_add_u32 v{t}, {16*j + 2*p}, v{TMP+6}")
            L.append(f"v_mul_u32_u24 v{t}, s{S_MAGIC}, v{t}")
            L.append(f"v_cvt_pk_bf16_f32 v{acc+r}, v{acc+r}, v{acc+r+1}")
            L.append(f"v_lshrrev_b32 v{t}, 16, v{t}")
            L.append(f"v_mad_u32_u24 v{t}, v{t}, s{S_HMUL}, v{TMP+7}")
            L.append(f"buffer_store_dword v{acc+r}, v{t}, s[{SRD_QK}:{SRD_QK+3}], s{S_EPOFF} offen offset:{32*j + 4*p}")
        return L
    def start_reads(slot, t, barrier):
        if barrier: a("s_barrier")
        a(set_base(slot, t))
        for i in range(D):
            for l in frag_reads(i, slot): a(l)
    def emit_job(slot0, t, nxt, mfma_of, fillers):
        groups = []
        total = 36 + (D if nxt else 0)
        for i in range(36):
            g = []
            if i % 2 == 0:
                issued_upto = min(i + D - 1, total - 1)
                g.append(f"s_waitcnt lgkmcnt({2 * (issued_upto - (i + 1))})")
            g.append(mfma_of(i))
            j = i + D
            if j < total:
                if j == 18:
                    if t == 0: g.append("s_barrier")
                    g.append(set_base(slot0 + 1, t))
                if j == 36:
                    if nxt[2]: g.append("s_barrier")
                    g.append(set_base(nxt[0], nxt[1]))
                slot = slot0 + (j // 18) if j < 36 else nxt[0]
                g += frag_reads(j % 36, slot)
            groups.append(g)
        if "noepi" in dbg: fillers = []
        for l in interleave(groups, fillers, start=3, end=34):
            if "notr" in dbg and (l.startswith("ds_read") or l.startswith("s_waitcnt lgkm")): continue
            if "halftr" in dbg and l.startswith("ds_read") and ("offset:" in l) and (int(l.split("offset:")[1]) // 2048) % 2 == 1: continue
            a(l)
    assert 36 % D == 0 and 18 % D == 0
    def pair_mfma(st, kh):
        def f(i):
            s, j = divmod(i, 18)
            ks = 18 * kh + 9 * s + (j >> 1)
            acc = st + 16 * (j & 1)
            c = "0" if (kh == 0 and i < 2) else f"v[{acc}:{acc+15}]"
            r = WR + 4 * (i % D)
            return f"v_mfma_f32_32x32x16_bf16 v[{acc}:{acc+15}], v[{r}:{r+3}], v[{XB+4*ks}:{XB+4*ks+3}], {c}"
        return f
    def tile_mfma(acc, swap):
        def f(i):
            s, j = divmod(i, 18)
            ks = 18 * s + 9 * (j & 1) + (j >> 1)
            c = "0" if i == 0 else f"v[{acc}:{acc+15}]"
            r = WR + 4 * (i % D)
            w = f"v[{r}:{r+3}]"; x = f"v[{XB+4*ks}:{XB+4*ks+3}]"
            A, B = (x, w) if swap else (w, x)
            return f"v_mfma_f32_32x32x16_bf16 v[{acc}:{acc+15}], {A}, {B}, {c}"
        return f
    SA, SB = ACC, ACC + 32
    start_reads(0, 0, True)
    emit_job(0, 0, (0, 1, False), pair_mfma(SA, 0), [])
    a(f"s_mov_b32 s{S_CNT}, s{S_NQUAD}")
    a(f"s_branch {name}_q1")
    a.label(f"{name}_quadloop")
    emit_job(0, 0, (0, 1, False), pair_mfma(SA, 0), silu_epilogue(SB))
    a.label(f"{name}_q1")
    emit_job(0, 1, (2, 0, True), pair_mfma(SB, 0), [])
    emit_job(2, 0, (2, 1, False), pair_mfma(SA, 1), [])
    emit_job(2, 1, (0, 0, True), pair_mfma(SB, 1), silu_epilogue(SA))
    a(f"s_sub_u32 s{S_CNT}, s{S_CNT}, 1")
    a(f"s_cmp_lg_u32 s{S_CNT}, 0")
    a(f"s_cbranch_scc1 {name}_quadloop")
    stamp_at(4)
    a(f"s_lshl_b32 s{S_TILE}, s{S_DT0}, 1")
    a(f"s_movk_i32 s{S_MAGIC}, 3641")
    a(f"s_mov_b32 s{S_HMUL}, {HEADB - 36}")
    QSC = 1.0 / (18 ** 0.5)
    def latch_qk():
        lq = a.uid(name + "_lq")
        a(f"s_lshl_b32 s{S_C0}, s{S_TILE}, 5")
        a(f"s_mov_b32 s{S_EPMUL}, {f2h(QSC)}")
        a(f"s_mov_b32 s{S_EPOFF}, 0")
        a(f"s_cmp_lt_u32 s{S_TILE}, 18")
        a(f"s_cbranch_scc1 {lq}")
        a(f"s_sub_u32 s{S_C0}, s{S_C0}, 576")
        a(f"s_mov_b32 s{S_EPMUL}, {f2h(1.0/LOG2E)}")
        a(f"s_mov_b32 s{S_EPOFF}, {SZ_Q}")
        a.label(lq)
    def latch_v():
        a(f"s_sub_u32 s{S_EPOFF}, s{S_TILE}, 36")
        a(f"s_lshl_b32 s{S_EPOFF}, s{S_EPOFF}, 17")
        a(f"s_mov_b32 s{S_EPMUL}, {f2h(1.0/LOG2E)}")
    ring = [SA, SA + 16, SB, SB + 16]
    for d in range(3):
        slot0 = (2 * d) % 4
        if d > 0:
            a(f"s_cmp_le_u32 s{S_NDT}, {d}")
            a(f"s_cbranch_scc1 {name}_done")
            start_reads(slot0, 0, True)
        acc0, acc1 = ring[(2 * d) % 4], ring[(2 * d + 1) % 4]
        lv, le = a.uid(name + "_v"), a.uid(name + "_e")
        a(f"s_cmp_ge_u32 s{S_TILE}, 36")
        a(f"s_cbranch_scc1 {lv}")
        for (swap, latch, epi) in ((False, latch_qk, qk_epilogue), (True, latch_v, v_epilogue)):
            if swap: a.label(lv)
            emit_job(slot0, 0, (slot0, 1, False), tile_mfma(acc0, swap), silu_epilogue(SB) if d == 0 else [])
            latch()
            emit_job(slot0, 1, None, tile_mfma(acc1, swap), epi(acc0))
            a(f"s_add_u32 s{S_TILE}, s{S_TILE}, 1")
            latch()
            a("s_nop 7")
            for l in epi(acc1): a(l)
            a(f"s_add_u32 s{S_TILE}, s{S_TILE}, 1")
            if not swap: a(f"s_branch {le}")
        a.label(le)
    a.label(f"{name}_done")
    stamp_at(5)
    if stamp:
        a(f"s_memrealtime s[{S_ST+14}:{S_ST+15}]")
        emit_stamp_store(a, S_ST, 8)
    a("s_endpgm")

    a.label(f"{name}_loader")
    S_NS, S_N, S_M, S_B13, S_BQ, S_LB, S_PFI = 44, 45, 49, 50, 51, 52, 53
    S_SO = 54
    V_L13, V_LQ, V_P13, V_PQ = 10, 11, 12, 13
    a(f"s_sub_u32 s{S_WAVE}, s{S_WAVE}, 4")
    a(f"s_cmp_ge_u32 s{S_WAVE}, 2")
    a(f"s_cselect_b32 s{SRD_W}, s10, s8")
    a(f"s_cselect_b32 s{SRD_W+1}, s11, s9")
    a(f"s_mov_b32 s{SRD_W+2}, {hex(576*4608*2)}")
    a(f"s_mov_b32 s{SRD_W+3}, 0x20000")
    make_srd(a, SRD_WQ, 6, 7, 0, 576 * 1728 * 2)
    a(f"s_movk_i32 s{S_TMP}, 9216")
    dma_lane_offset128(a, V_L13, V_LANE, S_TMP, V_T0, V_T1)
    a(f"s_movk_i32 s{S_TMP2}, 3456")
    dma_lane_offset128(a, V_LQ, V_LANE, S_TMP2, V_T0, V_T1)
    a(f"s_and_b32 s{S_PFI}, s{S_RB}, 7")
    a(f"s_mul_i32 s{S_PFI}, s{S_PFI}, 9")
    a(f"v_add_u32 v{V_T0}, s{S_PFI}, v{V_LANE}")
    a(f"v_mul_lo_u32 v{V_P13}, v{V_T0}, s{S_TMP}")
    a(f"v_mul_lo_u32 v{V_PQ}, v{V_T0}, s{S_TMP2}")
    a(f"v_cmp_gt_u32 vcc, 9, v{V_LANE}")
    a(f"v_mov_b32 v{V_T1}, 0x7fffffff")
    a("s_nop 1")
    a(f"v_cndmask_b32 v{V_P13}, v{V_T1}, v{V_P13}, vcc")
    a(f"v_cndmask_b32 v{V_PQ}, v{V_T1}, v{V_PQ}, vcc")
    a(f"s_and_b32 s{S_TMP}, s{S_WAVE}, 1")
    a(f"s_mul_i32 s{S_B13}, s{S_TMP}, {72*9216}")
    a(f"s_lshl_b32 s{S_TMP2}, s{S_Q0}, 7")
    a(f"s_add_u32 s{S_B13}, s{S_B13}, s{S_TMP2}")
    a(f"s_mul_i32 s{S_BQ}, s{S_TMP}, {72*3456}")
    a(f"s_lshr_b32 s{S_TMP}, s{S_WAVE}, 1")
    a(f"s_mul_i32 s{S_TMP}, s{S_TMP}, {144*3456}")
    a(f"s_add_u32 s{S_BQ}, s{S_BQ}, s{S_TMP}")
    a(f"s_lshl_b32 s{S_TMP2}, s{S_DT0}, 7")
    a(f"s_add_u32 s{S_BQ}, s{S_BQ}, s{S_TMP2}")
    a(f"s_mul_i32 s{S_LB}, s{S_WAVE}, 9216")
    a(f"s_lshl_b32 s{S_NS}, s{S_NQUAD}, 1")
    a(f"s_add_u32 s{S_NS}, s{S_NS}, s{S_NDT}")
    a(f"s_lshl_b32 s{S_NS}, s{S_NS}, 1")
    def slot_offset(m_sgpr, lab_q, lab_done):
        a(f"s_lshl_b32 s{S_TMP}, s{S_NQUAD}, 2")
        a(f"s_cmp_ge_u32 s{m_sgpr}, s{S_TMP}")
        a(f"s_cbranch_scc1 {lab_q}")
        a(f"s_lshr_b32 s{S_TMP}, s{m_sgpr}, 2")
        a(f"s_lshl_b32 s{S_TMP}, s{S_TMP}, 7")
        a(f"s_and_b32 s{S_TMP2}, s{m_sgpr}, 3")
        a(f"s_mul_i32 s{S_TMP2}, s{S_TMP2}, {144*9216}")
        a(f"s_add_u32 s{S_SO}, s{S_B13}, s{S_TMP}")
        a(f"s_add_u32 s{S_SO}, s{S_SO}, s{S_TMP2}")
    def slot_offset_q(m_sgpr):
        a(f"s_sub_u32 s{S_TMP}, s{m_sgpr}, s{S_TMP}")
        a(f"s_and_b32 s{S_TMP2}, s{S_TMP}, 1")
        a(f"s_mul_i32 s{S_TMP2}, s{S_TMP2}, {288*3456}")
        a(f"s_lshr_b32 s{S_TMP}, s{S_TMP}, 1")
        a(f"s_lshl_b32 s{S_TMP}, s{S_TMP}, 7")
        a(f"s_add_u32 s{S_SO}, s{S_BQ}, s{S_TMP}")
        a(f"s_add_u32 s{S_SO}, s{S_SO}, s{S_TMP2}")
    def dma_batch(vo, srd, step):
        for j in range(9):
            if "noload" not in dbg:
                a(f"buffer_load_dwordx4 v{vo}, s[{srd}:{srd+3}], s{S_SO} offen lds")
            if j < 8:
                a(f"s_add_u32 m0, m0, 1024")
                a(f"s_add_u32 s{S_SO}, s{S_SO}, {step}")
    def issue(m_sgpr):
        lq, ld = a.uid(name + "_iq"), a.uid(name + "_id")
        a(f"s_and_b32 s{S_TMP}, s{m_sgpr}, 3")
        a(f"s_mul_i32 s{S_TMP}, s{S_TMP}, {SLOT}")
        a(f"s_add_u32 m0, s{S_TMP}, s{S_LB}")
        slot_offset(m_sgpr, lq, ld)
        dma_batch(V_L13, SRD_W, 8 * 9216)
        a(f"s_branch {ld}")
        a.label(lq)
        slot_offset_q(m_sgpr)
        dma_batch(V_LQ, SRD_WQ, 8 * 3456)
        a.label(ld)
    def prefetch(m_sgpr):
        lq, ld = a.uid(name + "_pq"), a.uid(name + "_pd")
        slot_offset(m_sgpr, lq, ld)
        a(f"buffer_load_dword v20, v{V_P13}, s[{SRD_W}:{SRD_W+3}], s{S_SO} offen")
        a(f"s_branch {ld}")
        a.label(lq)
        slot_offset_q(m_sgpr)
        a(f"s_cmp_ge_u32 s{m_sgpr}, s{S_NS}")
        a(f"s_cselect_b32 s{S_SO}, 0x7ffff000, s{S_SO}")
        a(f"buffer_load_dword v20, v{V_PQ}, s[{SRD_WQ}:{SRD_WQ+3}], s{S_SO} offen")
        a.label(ld)
    for m in range(PD):
        a(f"s_mov_b32 s{S_M}, {m}")
        prefetch(S_M)
    a("s_barrier")
    a(f"s_mov_b32 s{S_N}, 0")
    a.label(f"{name}_lpro")
    issue(S_N)
    a(f"s_add_u32 s{S_M}, s{S_N}, {PD}")
    prefetch(S_M)
    a(f"s_add_u32 s{S_N}, s{S_N}, 1")
    a(f"s_cmp_lt_u32 s{S_N}, 3")
    a(f"s_cbranch_scc1 {name}_lpro")
    a("s_waitcnt vmcnt(21)")
    a("s_barrier")
    a(f"s_mov_b32 s{S_N}, 1")
    a.label(f"{name}_lloop")
    a(f"s_add_u32 s{S_M}, s{S_N}, 1")
    a(f"s_cmp_ge_u32 s{S_M}, s{S_NS}")
    a(f"s_cbranch_scc1 {name}_llast")
    a("s_waitcnt vmcnt(11)")
    a("s_barrier")
    a(f"s_add_u32 s{S_M}, s{S_N}, 2")
    a(f"s_cmp_ge_u32 s{S_M}, s{S_NS}")
    a(f"s_cbranch_scc1 {name}_lnext")
    issue(S_M)
    a(f"s_add_u32 s{S_M}, s{S_M}, {PD}")
    prefetch(S_M)
    a.label(f"{name}_lnext")
    a(f"s_add_u32 s{S_N}, s{S_N}, 1")
    a(f"s_branch {name}_lloop")
    a.label(f"{name}_llast")
    a("s_waitcnt vmcnt(0)")
    a("s_barrier")
    a.label(END)
    a("s_endpgm")
    return a.text() + kernel_descriptor(name, 256, 256)
```

```python
from lib import *
from k1 import f2h, perm_pi, emit_stamp_store

KB = 256 * 48
VROW = 512
VB = 19 * VROW
BUF = KB + VB
NBUF = 3
LDS_FLAG = NBUF * BUF
LDS_BYTES = LDS_FLAG + 64
OFF_SHIFT = 80.0
LAUNCH = ("k2_kernel", 256, 256, LDS_BYTES)

def gen_k2(name="k2_kernel", stamp=False, dbg=""):
    a = Asm()
    kernel_header(a, name)
    END = name + "_end"
    a("s_cmp_ge_u32 s2, 256")
    a(f"s_cbranch_scc1 {END}")
    attention_body(a, name, stamp, dbg)
    a.label(END)
    a("s_endpgm")
    return a.text() + kernel_descriptor(name, 168, 168)

def attention_body(a, name, stamp, dbg, wg="s2"):
    S_WAVE, S_HEAD, S_QB = 3, 14, 15
    SRD_Q, SRD_K, SRD_V, SRD_O = 16, 20, 24, 28
    S_TMP, S_TMP2, S_CH, S_MODE = 40, 41, 42, 43
    S_M0K, S_M0V, S_LB, S_LBN, S_KSRC, S_VSRC = 44, 45, 46, 47, 48, 49
    S_Q0, S_W0, S_LBX, S_I, S_NT = 50, 51, 52, 53, 54
    S_ST = 60
    V_LANE, V_N, V_HI, V_PI, V_T0, V_T1 = 1, 2, 3, 4, 5, 6
    V_KA, V_K2A = 7, 8
    V_VA = 10
    V_DK, V_DV = 18, 19
    V_MX = 22
    V_KC, V_K2C, V_VC = 24, 25, 26
    Q1, Q2 = 36, 44
    KF1, KF2 = 52, 60
    VF = 68
    SS = 84
    PP = 116
    OO = 132
    def stamp_at(i):
        if stamp: a(f"s_memtime s[{S_ST+2*i}:{S_ST+2*i+1}]")
    def put(l):
        if l.endswith(":"): a.label(l[:-1])
        else: a(l)
    a("s_load_dwordx2 s[12:13], s[0:1], 72")
    stamp_at(0)
    if stamp: a(f"s_memrealtime s[{S_ST+12}:{S_ST+13}]")
    a("v_lshrrev_b32 v1, 6, v0")
    a(f"s_and_b32 s14, {wg}, 7")
    a(f"v_readfirstlane_b32 s{S_WAVE}, v1")
    a("s_lshl_b32 s14, s14, 2")
    a(f"s_bfe_u32 s15, {wg}, 0x20003")
    a(f"s_add_u32 s{S_HEAD}, s14, s15")
    a(f"s_lshr_b32 s{S_QB}, {wg}, 5")
    a(f"v_and_b32 v{V_LANE}, 63, v0")
    a(f"v_and_b32 v{V_N}, 31, v{V_LANE}")
    a(f"v_lshrrev_b32 v{V_HI}, 5, v{V_LANE}")
    perm_pi(a, V_PI, V_N, V_T0)
    a("s_waitcnt lgkmcnt(0)")
    a(f"s_mul_i32 s{S_TMP}, s{S_HEAD}, {HEADB}")
    for srd, off in ((SRD_Q, WS_Q), (SRD_K, WS_K)):
        a(f"s_add_u32 s{srd}, s12, {hex(off)}")
        a(f"s_addc_u32 s{srd+1}, s13, 0")
        a(f"s_add_u32 s{srd}, s{srd}, s{S_TMP}")
        a(f"s_addc_u32 s{srd+1}, s{srd+1}, 0")
        a(f"s_mov_b32 s{srd+2}, {HEADB}")
        a(f"s_mov_b32 s{srd+3}, 0x20000")
    a(f"s_mul_i32 s{S_TMP}, s{S_HEAD}, {18*4096}")
    a(f"s_add_u32 s{SRD_V}, s12, {hex(WS_VT)}")
    a(f"s_addc_u32 s{SRD_V+1}, s13, 0")
    a(f"s_add_u32 s{SRD_V}, s{SRD_V}, s{S_TMP}")
    a(f"s_addc_u32 s{SRD_V+1}, s{SRD_V+1}, 0")
    a(f"s_mov_b32 s{SRD_V+2}, {18*4096}")
    a(f"s_mov_b32 s{SRD_V+3}, 0x20000")
    make_srd(a, SRD_O, 12, 13, WS_O, SZ_O)
    a(f"v_lshlrev_b32 v{V_DK}, 4, v{V_LANE}")
    a(f"v_xor_b32 v{V_T0}, v{V_N}, v{V_HI}")
    for i in range(3):
        a(f"s_add_u32 s{S_TMP}, s{S_WAVE}, {4*i}")
        a(f"s_lshl_b32 s{S_TMP}, s{S_TMP}, 1")
        a(f"s_and_b32 s{S_TMP2}, s{S_TMP}, 15")
        a(f"v_xor_b32 v{V_T1}, s{S_TMP2}, v{V_T0}")
        a(f"v_lshlrev_b32 v{V_T1}, 4, v{V_T1}")
        a(f"v_lshl_add_u32 v{V_T1}, v{V_HI}, 12, v{V_T1}")
        a(f"s_lshl_b32 s{S_TMP}, s{S_TMP}, 12")
        a(f"v_add_u32 v{V_DV+i}, s{S_TMP}, v{V_T1}")
    a(f"s_mul_i32 s{S_M0K}, s{S_WAVE}, 3072")
    a(f"s_lshl_b32 s{S_M0V}, s{S_WAVE}, 10")
    a(f"s_add_u32 s{S_M0V}, s{S_M0V}, {KB}")
    a(f"s_cmp_eq_u32 s{S_WAVE}, 0")
    a(f"s_cselect_b32 s{S_W0}, 1, 0")
    def dma_groups():
        G = []
        for i in range(3):
            G.append([f"s_add_u32 m0, s{S_LBN}, s{S_M0K}" if i == 0 else "s_add_u32 m0, m0, 1024",
                      f"s_add_u32 s{S_TMP}, s{S_KSRC}, s{S_M0K}" if i == 0 else f"s_add_u32 s{S_TMP}, s{S_TMP}, 1024",
                      f"buffer_load_dwordx4 v{V_DK}, s[{SRD_K}:{SRD_K+3}], s{S_TMP} offen lds"])
        for i in range(2):
            G.append([f"s_add_u32 m0, s{S_LBN}, s{S_M0V}" if i == 0 else "s_add_u32 m0, m0, 4096", "s_nop 0",
                      f"buffer_load_dwordx4 v{V_DV+i}, s[{SRD_V}:{SRD_V+3}], s{S_VSRC} offen lds"])
        lab = a.uid(name + "_w0")
        G.append([f"s_cmp_eq_u32 s{S_W0}, 0", f"s_cbranch_scc1 {lab}", "s_add_u32 m0, m0, 4096", "s_nop 0",
                  f"buffer_load_dwordx4 v{V_DV+2}, s[{SRD_V}:{SRD_V+3}], s{S_VSRC} offen lds", f"{lab}:"])
        return G
    def request(chunk_sgpr_or_imm, lds_base):
        if isinstance(chunk_sgpr_or_imm, int):
            a(f"s_mov_b32 s{S_KSRC}, {chunk_sgpr_or_imm * KB}")
            a(f"s_mov_b32 s{S_VSRC}, {chunk_sgpr_or_imm * 512}")
        else:
            a(f"s_mul_i32 s{S_KSRC}, {chunk_sgpr_or_imm}, {KB}")
            a(f"s_lshl_b32 s{S_VSRC}, {chunk_sgpr_or_imm}, 9")
        a(f"s_mov_b32 s{S_LBN}, {lds_base}")
        for g in dma_groups():
            for l in g: put(l)
    a(f"s_lshl_b32 s{S_Q0}, s{S_QB}, 8")
    a(f"s_lshl_b32 s{S_TMP2}, s{S_WAVE}, 6")
    a(f"s_add_u32 s{S_Q0}, s{S_Q0}, s{S_TMP2}")
    a(f"v_add_u32 v{V_T0}, s{S_Q0}, v{V_PI}")
    a(f"v_mul_u32_u24 v{V_T0}, 48, v{V_T0}")
    a(f"v_lshl_add_u32 v{V_T1}, v{V_HI}, 4, v{V_T0}")
    for j in range(2):
        a(f"buffer_load_dwordx4 v[{Q1+4*j}:{Q1+4*j+3}], v{V_T1}, s[{SRD_Q}:{SRD_Q+3}], 0 offen offset:{j*32*48}")
        a(f"buffer_load_dword v{Q2+4*j}, v{V_T0}, s[{SRD_Q}:{SRD_Q+3}], 0 offen offset:{j*32*48+32}")
    request(0, 0)
    request(1, BUF)
    a(f"v_mul_u32_u24 v{V_T0}, 48, v{V_PI}")
    a(f"v_lshl_add_u32 v{V_KA}, v{V_HI}, 4, v{V_T0}")
    a(f"v_add_u32 v{V_K2A}, 32, v{V_T0}")
    a(f"v_subrev_u32 v{V_T0}, 16, v{V_N}")
    a(f"v_cmp_gt_u32 vcc, 19, v{V_N}")
    a("s_nop 1")
    a(f"v_cndmask_b32 v{V_T0}, v{V_T0}, v{V_N}, vcc")
    a(f"v_and_b32 v{V_T1}, 15, v{V_T0}")
    a(f"v_xor_b32 v{V_T1}, v{V_T1}, v{V_HI}")
    a(f"v_lshlrev_b32 v{V_T0}, 9, v{V_T0}")
    a(f"v_add_u32 v{V_T0}, {KB}, v{V_T0}")
    for c in range(8):
        kt, m = c >> 1, c & 1
        a(f"v_xor_b32 v{V_VA+c}, {4*kt + 2*m}, v{V_T1}")
        a(f"v_lshl_add_u32 v{V_VA+c}, v{V_VA+c}, 4, v{V_T0}")
    a(f"v_mov_b32 v{SS}, 0x3f803f80")
    a(f"v_and_b32 v{V_T0}, 127, v0")
    a(f"v_lshlrev_b32 v{V_T0}, 2, v{V_T0}")
    a(f"v_add_u32 v{V_T0}, {KB + 18*VROW}, v{V_T0}")
    for b in range(NBUF):
        a(f"ds_write_b32 v{V_T0}, v{SS} offset:{b*BUF}")
    for s in range(2):
        a(f"v_mov_b32 v{KF2+4*s+1}, 0x3f803f80")
        a(f"v_mov_b32 v{KF2+4*s+2}, 0x00003f80")
        a(f"v_mov_b32 v{KF2+4*s+3}, 0")
    a(f"s_mov_b32 s{S_MODE}, 0")
    a("s_waitcnt vmcnt(5) lgkmcnt(0)")
    a("s_barrier")
    stamp_at(1)
    a(f"v_cmp_eq_u32 vcc, 0, v{V_HI}")
    a("s_nop 1")
    for j in range(2):
        a(f"v_cndmask_b32 v{Q2+4*j}, 0, v{Q2+4*j}, vcc")
        a(f"v_mov_b32 v{Q2+4*j+3}, 0")

    def set_k_addr(lb):
        return [f"v_add_u32 v{V_KC}, s{lb}, v{V_KA}", f"v_add_u32 v{V_K2C}, s{lb}, v{V_K2A}"]
    def set_v_addr(lb):
        return [f"v_add_u32 v{V_VC+c}, s{lb}, v{V_VA+c}" for c in range(8)]
    def k_reads(kt, s):
        return [f"ds_read_b128 v[{KF1+4*s}:{KF1+4*s+3}], v{V_KC} offset:{kt*1536}",
                f"ds_read_b32 v{KF2+4*s}, v{V_K2C} offset:{kt*1536}"]
    def v_reads(kt, s):
        o = (kt >> 2) * 256
        return [f"ds_read_b128 v[{VF+8*s+4*m}:{VF+8*s+4*m+3}], v{V_VC+2*(kt&3)+m} offset:{o}" for m in range(2)]
    def qk(s, j, sb):
        d = SS + 16 * sb
        return [f"v_mfma_f32_32x32x16_bf16 v[{d}:{d+15}], v[{KF1+4*s}:{KF1+4*s+3}], v[{Q1+4*j}:{Q1+4*j+3}], 0",
                f"v_mfma_f32_32x32x16_bf16 v[{d}:{d+15}], v[{KF2+4*s}:{KF2+4*s+3}], v[{Q2+4*j}:{Q2+4*j+3}], v[{d}:{d+15}]"]
    def pv(s, j, pb):
        o = OO + 16 * j; p = PP + 8 * pb
        return [f"v_mfma_f32_32x32x16_bf16 v[{o}:{o+15}], v[{VF+8*s+4*m}:{VF+8*s+4*m+3}], v[{p+4*m}:{p+4*m+3}], v[{o}:{o+15}]" for m in range(2)]

    a.label(f"{name}_maxpass")
    for j in range(2):
        a(f"v_mov_b32 v{Q2+4*j+1}, 0")
        a(f"v_mov_b32 v{Q2+4*j+2}, 0")
        a(f"v_mov_b32 v{V_MX+j}, 0xff800000")
    a(f"s_mov_b32 s{S_CH}, 0")
    a(f"s_mov_b32 s{S_LB}, 0")
    a(f"s_cmp_eq_u32 s{S_MODE}, 0")
    a(f"s_cselect_b32 s{S_NT}, 4, 8")
    a.label(f"{name}_maxchunk")
    for l in set_k_addr(S_LB): a(l)
    a(f"s_mov_b32 s{S_I}, 0")
    a.label(f"{name}_maxtile")
    a(f"ds_read_b128 v[{KF1}:{KF1+3}], v{V_KC}")
    a(f"ds_read_b32 v{KF2}, v{V_K2C}")
    a(f"v_add_u32 v{V_KC}, 1536, v{V_KC}")
    a(f"v_add_u32 v{V_K2C}, 1536, v{V_K2C}")
    a("s_waitcnt lgkmcnt(0)")
    for j in range(2):
        for l in qk(0, j, j): a(l)
    a("s_nop 7"); a("s_nop 7")
    for j in range(2):
        d = SS + 16 * j
        for r in range(0, 16, 2):
            a(f"v_max3_f32 v{V_MX+j}, v{d+r}, v{d+r+1}, v{V_MX+j}")
    a(f"s_add_u32 s{S_I}, s{S_I}, 1")
    a(f"s_cmp_lt_u32 s{S_I}, s{S_NT}")
    a(f"s_cbranch_scc1 {name}_maxtile")
    a(f"s_cmp_eq_u32 s{S_MODE}, 0")
    a(f"s_cbranch_scc1 {name}_maxdone")
    a(f"s_add_u32 s{S_CH}, s{S_CH}, 1")
    a("s_barrier")
    a(f"s_cmp_ge_u32 s{S_CH}, 8")
    a(f"s_cbranch_scc1 {name}_maxall")
    request(f"s{S_CH}", 0)
    a("s_waitcnt vmcnt(0)")
    a("s_barrier")
    a(f"s_branch {name}_maxchunk")
    a.label(f"{name}_maxall")
    request(0, 0)
    request(1, BUF)
    a("s_waitcnt vmcnt(0)")
    a("s_barrier")
    a.label(f"{name}_maxdone")
    a(f"s_cmp_eq_u32 s{S_MODE}, 0")
    a(f"s_cselect_b32 s{S_TMP}, {f2h(OFF_SHIFT)}, 0")
    for j in range(2):
        m, t0, t1, t2 = V_MX + j, SS, SS + 1, SS + 2
        a(f"v_mov_b32 v{t0}, v{m}")
        a("s_nop 1")
        a(f"v_permlane32_swap_b32 v{m}, v{t0}")
        a("s_nop 1")
        a(f"v_max_f32 v{m}, v{m}, v{t0}")
        a(f"v_add_f32 v{m}, s{S_TMP}, v{m}")
        a(f"v_sub_f32 v{m}, 0, v{m}")
        a(f"v_and_b32 v{t0}, 0xffff0000, v{m}")
        a(f"v_sub_f32 v{m}, v{m}, v{t0}")
        a(f"v_and_b32 v{t1}, 0xffff0000, v{m}")
        a(f"v_sub_f32 v{m}, v{m}, v{t1}")
        a(f"v_lshrrev_b32 v{t0}, 16, v{t0}")
        a(f"v_or_b32 v{t0}, v{t0}, v{t1}")
        a(f"v_lshrrev_b32 v{t2}, 16, v{m}")
        a(f"v_cmp_eq_u32 vcc, 0, v{V_HI}")
        a("s_nop 1")
        a(f"v_cndmask_b32 v{Q2+4*j+1}, 0, v{t0}, vcc")
        a(f"v_cndmask_b32 v{Q2+4*j+2}, 0, v{t2}, vcc")
    for r in range(32): a(f"v_mov_b32 v{OO+r}, 0")
    for r in range(8):
        a(f"v_mov_b32 v{PP+8+r}, 0")
        a(f"v_mov_b32 v{VF+8+r}, 0")
    stamp_at(2)

    a(f"s_mov_b32 s{S_CH}, 0")
    a(f"s_mov_b32 s{S_LB}, 0")
    a(f"s_mov_b32 s{S_LBX}, {BUF}")
    a(f"s_mov_b32 s{S_LBN}, {2*BUF}")
    a(f"s_mov_b32 s{S_KSRC}, {2*KB}")
    a(f"s_mov_b32 s{S_VSRC}, {2*512}")
    for l in set_k_addr(S_LB) + set_v_addr(S_LB): a(l)
    for l in k_reads(0, 0): a(l)
    a("s_waitcnt lgkmcnt(0)")
    for l in qk(0, 0, 0): a(l)
    a("s_nop 7")
    a("s_nop 3")
    def unit(mf, sb, extra):
        d = SS + 16 * sb; p = PP + 8 * sb
        ex = [f"v_exp_f32 v{d+i}, v{d+i}" for i in range(16)]
        cv = [f"v_cvt_pk_bf16_f32 v{p+i}, v{d+2*i}, v{d+2*i+1}" for i in range(8)]
        seq = [ex[0:4], ex[4:8] + cv[0:2], ex[8:12] + cv[2:4], ex[12:16] + cv[4:8]]
        for i in range(4):
            for l in extra.get(("pre", i), []): put(l)
            a(mf[i])
            for l in extra.get(i, []): put(l)
            for l in seq[i]: a(l)
    a.label(f"{name}_chunk")
    dg = dma_groups()
    skip = a.uid(name + "_nodma")
    for kt in range(8):
        s = kt & 1
        exA = {}
        if kt == 1:
            exA[("pre", 0)] = ["s_waitcnt vmcnt(0)", "s_barrier"]
        if kt < 7:
            exA[0] = k_reads(kt + 1, s ^ 1) + v_reads(kt, s)
        else:
            exA[0] = set_k_addr(S_LBX) + k_reads(0, s ^ 1) + v_reads(kt, s)
        if 2 <= kt <= 4:
            lab = a.uid(name + "_nd")
            exA[3] = [f"s_cmp_ge_u32 s{S_CH}, 6", f"s_cbranch_scc1 {lab}"] + dg[2*(kt-2)] + dg[2*(kt-2)+1] + [f"{lab}:"]
        q1 = qk(s, 1, 1); p1 = pv(s ^ 1, 1, 1)
        unit([q1[0], q1[1], p1[0], p1[1]], 0, exA)
        exB = {("pre", 0): ["s_waitcnt lgkmcnt(0)"]}
        if kt == 7:
            exB[0] = set_v_addr(S_LBX)
            exB[2] = [f"s_add_u32 s{S_CH}, s{S_CH}, 1", f"s_mov_b32 s{S_TMP2}, s{S_LB}", f"s_mov_b32 s{S_LB}, s{S_LBX}",
                      f"s_mov_b32 s{S_LBX}, s{S_LBN}", f"s_mov_b32 s{S_LBN}, s{S_TMP2}",
                      f"s_add_u32 s{S_KSRC}, s{S_KSRC}, {KB}", f"s_add_u32 s{S_VSRC}, s{S_VSRC}, 512"]
        q0 = qk(s ^ 1, 0, 0); p0 = pv(s, 0, 0)
        unit([q0[0], q0[1], p0[0], p0[1]], 1, exB)
    a(f"s_cmp_lt_u32 s{S_CH}, 8")
    a(f"s_cbranch_scc1 {name}_chunk")
    for l in pv(1, 1, 1): a(l)
    stamp_at(3)
    a("s_nop 7"); a("s_nop 7")
    BAD = 56
    a(f"s_mov_b64 s[{BAD}:{BAD+1}], 0")
    RINV = SS
    for j in range(2):
        o = OO + 16 * j
        l0, l1 = RINV + 2 * j, RINV + 2 * j + 1
        a(f"v_mov_b32 v{l0}, v{o+10}")
        a(f"v_mov_b32 v{l1}, v{o+10}")
        a("s_nop 1")
        a(f"v_permlane32_swap_b32 v{l0}, v{l1}")
        a("s_nop 1")
        a(f"v_mov_b32 v{SS+8}, {f2h(2.0**100)}")
        a(f"v_cmp_nlt_f32 vcc, v{l0}, v{SS+8}")
        a("s_nop 3")
        a(f"s_or_b64 s[{BAD}:{BAD+1}], s[{BAD}:{BAD+1}], vcc")
        a(f"v_cmp_ngt_f32 vcc, v{l0}, 0")
        a("s_nop 3")
        a(f"s_or_b64 s[{BAD}:{BAD+1}], s[{BAD}:{BAD+1}], vcc")
        a(f"v_mov_b32 v{SS+9}, 0x203")
        for r in range(8):
            a(f"v_cmp_class_f32 vcc, v{o+r}, v{SS+9}")
            a("s_nop 3")
            a(f"s_or_b64 s[{BAD}:{BAD+1}], s[{BAD}:{BAD+1}], vcc")
        a(f"v_rcp_f32 v{l0}, v{l0}")
    a(f"s_cmp_lg_u64 s[{BAD}:{BAD+1}], 0")
    a(f"s_cselect_b32 s{S_TMP}, 1, 0")
    a(f"s_cmp_eq_u32 s{S_MODE}, 1")
    a(f"s_cselect_b32 s{S_TMP}, 0, s{S_TMP}")
    if "force1" in dbg:
        a(f"s_xor_b32 s{S_TMP}, s{S_MODE}, 1")
    a(f"v_mov_b32 v{V_T0}, s{S_TMP}")
    a(f"s_lshl_b32 s{S_TMP2}, s{S_WAVE}, 2")
    a(f"s_add_u32 s{S_TMP2}, s{S_TMP2}, {LDS_FLAG}")
    a(f"v_mov_b32 v{V_T1}, s{S_TMP2}")
    a(f"ds_write_b32 v{V_T1}, v{V_T0}")
    a("s_waitcnt lgkmcnt(0)")
    a("s_barrier")
    a(f"v_mov_b32 v{V_T1}, {LDS_FLAG}")
    a(f"ds_read_b128 v[{SS+12}:{SS+15}], v{V_T1}")
    a("s_waitcnt lgkmcnt(0)")
    a(f"v_or_b32 v{SS+12}, v{SS+12}, v{SS+13}")
    a(f"v_or3_b32 v{SS+12}, v{SS+12}, v{SS+14}, v{SS+15}")
    a("s_nop 0")
    a(f"v_readfirstlane_b32 s{S_TMP}, v{SS+12}")
    a("s_nop 3")
    a(f"s_cmp_eq_u32 s{S_TMP}, 0")
    a(f"s_cbranch_scc1 {name}_store")
    a(f"s_mov_b32 s{S_MODE}, 1")
    a("s_barrier")
    request(0, 0)
    a("s_waitcnt vmcnt(0)")
    a("s_barrier")
    a(f"s_branch {name}_maxpass")
    a.label(f"{name}_store")
    AD = SS + 16
    a(f"s_mul_i32 s{S_TMP}, s{S_HEAD}, 18")
    a(f"v_lshl_add_u32 v{V_T0}, v{V_HI}, 2, s{S_TMP}")
    a(f"v_lshlrev_b32 v{V_T1}, 4, v{V_N}")
    for w, dc in enumerate((0, 2, 8, 10, 16)):
        c, t = AD + 8, AD + 9
        a(f"v_add_u32 v{c}, {dc}, v{V_T0}")
        a(f"v_lshrrev_b32 v{t}, 4, v{c}")
        a(f"v_lshl_add_u32 v{AD+w}, v{t}, 10, v{V_T1}")
        a(f"v_bfe_u32 v{t}, v{c}, 3, 1")
        a(f"v_lshl_add_u32 v{AD+w}, v{t}, 9, v{AD+w}")
        a(f"v_bfe_u32 v{t}, v{c}, 1, 2")
        a(f"v_lshl_add_u32 v{AD+w}, v{t}, 2, v{AD+w}")
    a(f"v_cmp_eq_u32 vcc, 0, v{V_HI}")
    a(f"v_mov_b32 v{AD+8}, 0x7fffffff")
    a("s_nop 0")
    a(f"v_cndmask_b32 v{AD+4}, v{AD+8}, v{AD+4}, vcc")
    for j in range(2):
        o = OO + 16 * j
        a(f"s_lshr_b32 s{S_TMP}, s{S_Q0}, 5")
        a(f"s_add_u32 s{S_TMP}, s{S_TMP}, {j}")
        a(f"s_mul_i32 s{S_TMP}, s{S_TMP}, 36864")
        for r in range(10):
            a(f"v_mul_f32 v{o+r}, v{o+r}, v{RINV+2*j}")
        for w in range(5):
            a(f"v_cvt_pk_bf16_f32 v{o+w}, v{o+2*w}, v{o+2*w+1}")
        for w in range(5):
            a(f"buffer_store_dword v{o+w}, v{AD+w}, s[{SRD_O}:{SRD_O+3}], s{S_TMP} offen")
    stamp_at(4)
    stamp_at(5)
    if stamp:
        a(f"s_memrealtime s[{S_ST+12+2}:{S_ST+12+3}]")
        emit_stamp_store(a, S_ST, 8)
```

```python
from lib import *
from k1 import f2h, LOG2E, perm_pi, tr_lane_base128, dma_lane_offset128, emit_stamp_store

LDS_BYTES = 576 * 128
LAUNCH = ("k3_kernel", 288, 256, LDS_BYTES)
NSPLIT = 4

def gen_k3(name="k3_kernel", stamp=False, dbg="", D=6):
    a = Asm()
    kernel_header(a, name)
    END = name + "_end"
    S_WAVE, S_TB, S_CT = 3, 14, 15
    SRD_W, SRD_O, SRD_G, SRD_X, SRD_OUT = 16, 20, 24, 28, 32
    S_TMP, S_TMP2, S_OFF, S_CG = 40, 41, 42, 43
    S_ST = 60
    V_LANE, V_N, V_HI, V_T0, V_T1, V_LB, V_DL, V_L16, V_XA, V_B1 = 1, 2, 3, 4, 5, 6, 8, 9, 10, 11
    OB = 16
    ACC = 160
    WR = 176
    GB = 200
    XB = 232
    def stamp_at(i):
        if stamp: a(f"s_memtime s[{S_ST+2*i}:{S_ST+2*i+1}]")
    a("s_cmp_ge_u32 s2, 288")
    a(f"s_cbranch_scc1 {END}")
    a("s_load_dwordx2 s[4:5], s[0:1], 0")
    a("s_load_dwordx2 s[6:7], s[0:1], 16")
    a("s_load_dwordx2 s[8:9], s[0:1], 56")
    a("s_load_dwordx2 s[12:13], s[0:1], 72")
    stamp_at(0)
    if stamp: a(f"s_memrealtime s[{S_ST+12}:{S_ST+13}]")
    a("v_lshrrev_b32 v1, 6, v0")
    a(f"s_and_b32 s{S_TMP}, s2, 7")
    a(f"v_readfirstlane_b32 s{S_WAVE}, v1")
    a(f"s_lshr_b32 s{S_TMP2}, s2, 3")
    a(f"s_and_b32 s{S_TB}, s{S_TMP2}, 3")
    a(f"s_lshl_b32 s{S_TMP}, s{S_TMP}, 2")
    a(f"s_add_u32 s{S_TB}, s{S_TB}, s{S_TMP}")
    a(f"s_lshr_b32 s{S_CG}, s{S_TMP2}, 2")
    a(f"s_lshl_b32 s{S_TB}, s{S_TB}, 1")
    a(f"s_lshr_b32 s{S_TMP}, s{S_WAVE}, 1")
    a(f"s_add_u32 s{S_TB}, s{S_TB}, s{S_TMP}")
    a(f"s_lshl_b32 s{S_CT}, s{S_CG}, 1")
    a(f"s_and_b32 s{S_TMP}, s{S_WAVE}, 1")
    a(f"s_add_u32 s{S_CT}, s{S_CT}, s{S_TMP}")
    a(f"v_and_b32 v{V_LANE}, 63, v0")
    a("s_waitcnt lgkmcnt(0)")
    make_srd(a, SRD_W, 6, 7, 0, 576 * 1152)
    make_srd(a, SRD_O, 12, 13, WS_O, SZ_O)
    make_srd(a, SRD_G, 12, 13, WS_G, NSPLIT * SZ_G1)
    make_srd(a, SRD_X, 4, 5, 0, 2048 * 1152)
    make_srd(a, SRD_OUT, 8, 9, 0, 2048 * 1152)
    a(f"s_movk_i32 s{S_TMP}, 1152")
    dma_lane_offset128(a, V_DL, V_LANE, S_TMP, V_T0, V_T1)
    a(f"s_mul_i32 s{S_OFF}, s{S_WAVE}, {18*8*1152}")
    a(f"s_lshl_b32 s{S_TMP}, s{S_CG}, 7")
    a(f"s_add_u32 s{S_OFF}, s{S_OFF}, s{S_TMP}")
    a(f"s_mul_i32 s{S_TMP}, s{S_WAVE}, {18*1024}")
    a(f"s_mov_b32 m0, s{S_TMP}")
    for j in range(18):
        a("s_nop 0")
        a(f"buffer_load_dwordx4 v{V_DL}, s[{SRD_W}:{SRD_W+3}], s{S_OFF} offen lds")
        if j < 17:
            a(f"s_add_u32 s{S_OFF}, s{S_OFF}, {8*1152}")
            a("s_add_u32 m0, m0, 1024")
    a(f"v_lshlrev_b32 v{V_L16}, 4, v{V_LANE}")
    a(f"s_mul_i32 s{S_OFF}, s{S_TB}, 36864")
    for ks in range(36):
        if ks % 4 == 0 and ks > 0: a(f"s_add_u32 s{S_OFF}, s{S_OFF}, 4096")
        a(f"buffer_load_dwordx4 v[{OB+4*ks}:{OB+4*ks+3}], v{V_L16}, s[{SRD_O}:{SRD_O+3}], s{S_OFF} offen offset:{(ks%4)*1024}")
    a(f"v_and_b32 v{V_N}, 31, v{V_LANE}")
    a(f"v_lshrrev_b32 v{V_HI}, 5, v{V_LANE}")
    perm_pi(a, V_T0, V_N, V_T1)
    a(f"s_lshl_b32 s{S_TMP}, s{S_TB}, 5")
    a(f"v_add_u32 v{V_T0}, s{S_TMP}, v{V_T0}")
    a(f"s_movk_i32 s{S_TMP}, 1152")
    a(f"v_mul_lo_u32 v{V_XA}, v{V_T0}, s{S_TMP}")
    a(f"v_lshl_add_u32 v{V_XA}, v{V_HI}, 4, v{V_XA}")
    a(f"s_lshl_b32 s{S_TMP}, s{S_CT}, 6")
    a(f"v_add_u32 v{V_XA}, s{S_TMP}, v{V_XA}")
    tr_lane_base128(a, V_LB, V_LANE, V_T0, V_T1)
    a(f"s_and_b32 s{S_TMP}, s{S_WAVE}, 1")
    a(f"s_lshl_b32 s{S_TMP}, s{S_TMP}, 6")
    a(f"v_xor_b32 v{V_LB}, s{S_TMP}, v{V_LB}")
    a(f"v_add_u32 v{V_B1}, 36864, v{V_LB}")
    stamp_at(1)
    a("s_waitcnt vmcnt(36)")
    a("s_barrier")
    a(f"s_mul_i32 s{S_TMP}, s{S_TB}, 18")
    a(f"s_add_u32 s{S_TMP}, s{S_TMP}, s{S_CT}")
    a(f"s_lshl_b32 s{S_OFF}, s{S_TMP}, 12")
    def g_loads(dst):
        for q in range(4):
            a(f"buffer_load_dwordx4 v[{dst+4*q}:{dst+4*q+3}], v{V_L16}, s[{SRD_G}:{SRD_G+3}], s{S_OFF} offen offset:{q*1024}")
        a(f"s_add_u32 s{S_OFF}, s{S_OFF}, {SZ_G1}")
    g_loads(GB); g_loads(GB + 16)
    a(f"buffer_load_dwordx4 v[{XB}:{XB+3}], v{V_XA}, s[{SRD_X}:{SRD_X+3}], 0 offen")
    a(f"buffer_load_dwordx4 v[{XB+4}:{XB+7}], v{V_XA}, s[{SRD_X}:{SRD_X+3}], 0 offen offset:32")
    def reads(i):
        r = WR + 4 * (i % D)
        base, k = (V_LB, i) if i < 18 else (V_B1, i - 18)
        return [f"ds_read_b64_tr_b16 v[{r}:{r+1}], v{base} offset:{k*2048}",
                f"ds_read_b64_tr_b16 v[{r+2}:{r+3}], v{base} offset:{k*2048+512}"]
    for i in range(D):
        for l in reads(i): a(l)
    for i in range(36):
        if i % 4 == 0: a(f"s_waitcnt vmcnt({min(35 - (i + 3), 35) + 10})")
        if i % 2 == 0: a(f"s_waitcnt lgkmcnt({2 * (min(i + D - 1, 35) - (i + 1))})")
        r = WR + 4 * (i % D)
        c = "0" if i == 0 else f"v[{ACC}:{ACC+15}]"
        a(f"v_mfma_f32_32x32x16_bf16 v[{ACC}:{ACC+15}], v[{r}:{r+3}], v[{OB+4*i}:{OB+4*i+3}], {c}")
        if i + D < 36:
            for l in reads(i + D): a(l)
    stamp_at(2)
    a("s_waitcnt vmcnt(2)")
    for r in range(16): a(f"v_add_f32 v{GB+r}, v{GB+r}, v{GB+16+r}")
    g_loads(GB + 16)
    g_loads(OB)
    a("s_waitcnt vmcnt(4)")
    for r in range(16): a(f"v_add_f32 v{GB+r}, v{GB+r}, v{GB+16+r}")
    a("s_waitcnt vmcnt(0)")
    for r in range(16): a(f"v_add_f32 v{GB+r}, v{GB+r}, v{OB+r}")
    stamp_at(3)
    C2 = 1.0 / (LOG2E * LOG2E)
    a(f"s_mov_b32 s{S_TMP}, {f2h(C2)}")
    a(f"s_mov_b32 s{S_TMP2}, {f2h(-LOG2E)}")
    T = GB + 16
    for r in range(16):
        a(f"v_mul_f32 v{GB+r}, s{S_TMP}, v{GB+r}")
        a(f"v_mul_f32 v{T+r}, s{S_TMP2}, v{GB+r}")
    for r in range(16): a(f"v_exp_f32 v{T+r}, v{T+r}")
    for r in range(16): a(f"v_add_f32 v{T+r}, 1.0, v{T+r}")
    for r in range(16): a(f"v_rcp_f32 v{T+r}, v{T+r}")
    for r in range(16): a(f"v_mul_f32 v{GB+r}, v{GB+r}, v{ACC+r}")
    for r in range(16):
        d = r // 2
        if r % 2 == 0: a(f"v_lshlrev_b32 v{OB+r}, 16, v{XB+d}")
        else: a(f"v_and_b32 v{OB+r}, 0xffff0000, v{XB+d}")
    for r in range(16): a(f"v_fma_f32 v{GB+r}, v{GB+r}, v{T+r}, v{OB+r}")
    for r in range(8): a(f"v_cvt_pk_bf16_f32 v{GB+r}, v{GB+2*r}, v{GB+2*r+1}")
    a(f"buffer_store_dwordx4 v[{GB}:{GB+3}], v{V_XA}, s[{SRD_OUT}:{SRD_OUT+3}], 0 offen")
    a(f"buffer_store_dwordx4 v[{GB+4}:{GB+7}], v{V_XA}, s[{SRD_OUT}:{SRD_OUT+3}], 0 offen offset:32")
    stamp_at(4); stamp_at(5)
    if stamp:
        a(f"s_memrealtime s[{S_ST+14}:{S_ST+15}]")
        emit_stamp_store(a, S_ST, 8)
    a.label(END)
    a("s_endpgm")
    return a.text() + kernel_descriptor(name, 240, 240)
```

```python
from lib import *
from k1 import f2h, tr_lane_base128, dma_lane_offset128, emit_stamp_store

DSLOT = 24576
NSLOT = 18
LDS_BYTES = 3 * DSLOT
LAUNCH = ("kd_kernel", 192, 256, LDS_BYTES)

def gen_kd(name="kd_kernel", stamp=False, dbg=""):
    a = Asm()
    kernel_header(a, name)
    END = name + "_end"
    a("s_cmp_ge_u32 s2, 192")
    a(f"s_cbranch_scc1 {END}")
    down_body(a, name, stamp, dbg, "s2")
    a.label(END)
    a("s_endpgm")
    return a.text() + kernel_descriptor(name, 208, 208)

def down_body(a, name, stamp, dbg, wg, D=6):
    S_WAVE, S_RB, S_CG, S_KS = 3, 14, 15, 40
    SRD_W, SRD_H, SRD_G = 16, 20, 24
    S_TMP, S_TMP2, S_N, S_WOFF, S_HOFF, S_SLOT = 41, 42, 43, 44, 45, 46
    S_DO = 48
    S_M0W = 54
    S_ST = 60
    V_LANE, V_T0, V_T1, V_LB, V_B0, V_DL, V_HL = 1, 2, 3, 4, 6, 8, 9
    ACC = 16
    HB = 112
    WR = 160
    def stamp_at(i):
        if stamp: a(f"s_memtime s[{S_ST+2*i}:{S_ST+2*i+1}]")
    a("s_load_dwordx2 s[4:5], s[0:1], 48")
    a("s_load_dwordx2 s[12:13], s[0:1], 72")
    stamp_at(0)
    if stamp: a(f"s_memrealtime s[{S_ST+12}:{S_ST+13}]")
    a("v_lshrrev_b32 v1, 6, v0")
    a(f"s_and_b32 s{S_TMP}, {wg}, 7")
    a(f"v_readfirstlane_b32 s{S_WAVE}, v1")
    a(f"s_lshr_b32 s{S_TMP2}, {wg}, 3")
    a(f"s_and_b32 s{S_KS}, s{S_TMP}, 3")
    a(f"s_lshr_b32 s{S_TMP}, s{S_TMP}, 2")
    a(f"s_lshl_b32 s{S_TMP}, s{S_TMP}, 3")
    a(f"s_and_b32 s{S_RB}, s{S_TMP2}, 7")
    a(f"s_add_u32 s{S_RB}, s{S_RB}, s{S_TMP}")
    a(f"s_lshr_b32 s{S_CG}, s{S_TMP2}, 3")
    a(f"v_and_b32 v{V_LANE}, 63, v0")
    a("s_waitcnt lgkmcnt(0)")
    make_srd(a, SRD_W, 4, 5, 0, 4608 * 1152)
    make_srd(a, SRD_H, 12, 13, WS_H, SZ_H)
    make_srd(a, SRD_G, 12, 13, WS_G, 4 * SZ_G1)
    a(f"s_movk_i32 s{S_TMP}, 1152")
    dma_lane_offset128(a, V_DL, V_LANE, S_TMP, V_T0, V_T1)
    a(f"v_lshlrev_b32 v{V_HL}, 4, v{V_LANE}")
    tr_lane_base128(a, V_LB, V_LANE, V_T0, V_T1)
    a(f"v_xor_b32 v{V_LB+1}, 64, v{V_LB}")
    for j in range(6):
        a(f"s_mul_i32 s{S_TMP}, s{S_WAVE}, 6")
        a(f"s_add_u32 s{S_TMP}, s{S_TMP}, {j}")
        a(f"s_lshr_b32 s{S_TMP2}, s{S_TMP}, 3")
        a(f"s_and_b32 s{S_TMP}, s{S_TMP}, 7")
        a(f"s_mul_i32 s{S_TMP}, s{S_TMP}, {8*1152}")
        a(f"s_lshl_b32 s{S_TMP2}, s{S_TMP2}, 7")
        a(f"s_add_u32 s{S_DO+j}, s{S_TMP}, s{S_TMP2}")
    a(f"s_mul_i32 s{S_M0W}, s{S_WAVE}, 6144")
    a(f"s_mul_i32 s{S_WOFF}, s{S_KS}, {1152*1152}")
    a(f"s_mul_i32 s{S_TMP}, s{S_CG}, 384")
    a(f"s_add_u32 s{S_WOFF}, s{S_WOFF}, s{S_TMP}")
    a(f"s_lshl_b32 s{S_TMP}, s{S_RB}, 2")
    a(f"s_add_u32 s{S_TMP}, s{S_TMP}, s{S_WAVE}")
    a(f"s_mul_i32 s{S_HOFF}, s{S_TMP}, 288")
    a(f"s_mul_i32 s{S_TMP2}, s{S_KS}, 72")
    a(f"s_add_u32 s{S_HOFF}, s{S_HOFF}, s{S_TMP2}")
    a(f"s_lshl_b32 s{S_HOFF}, s{S_HOFF}, 10")
    S_GOFF = 55
    a(f"s_mul_i32 s{S_GOFF}, s{S_TMP}, 18")
    a(f"s_mul_i32 s{S_TMP2}, s{S_KS}, {64*18}")
    a(f"s_add_u32 s{S_GOFF}, s{S_GOFF}, s{S_TMP2}")
    a(f"s_mul_i32 s{S_TMP2}, s{S_CG}, 6")
    a(f"s_add_u32 s{S_GOFF}, s{S_GOFF}, s{S_TMP2}")
    a(f"s_lshl_b32 s{S_GOFF}, s{S_GOFF}, 12")
    def request(ring):
        L = []
        L.append(f"s_add_u32 m0, s{S_M0W}, {ring*DSLOT}")
        for j in range(6):
            L.append(f"s_add_u32 s{S_TMP}, s{S_WOFF}, s{S_DO+j}")
            L.append(f"buffer_load_dwordx4 v{V_DL}, s[{SRD_W}:{SRD_W+3}], s{S_TMP} offen lds")
            if j < 5: L.append("s_add_u32 m0, m0, 1024")
        for k in range(4):
            r = HB + 16 * ring + 4 * k
            L.append(f"buffer_load_dwordx4 v[{r}:{r+3}], v{V_HL}, s[{SRD_H}:{SRD_H+3}], s{S_HOFF} offen offset:{k*1024}")
        L.append(f"s_add_u32 s{S_WOFF}, s{S_WOFF}, {64*1152}")
        L.append(f"s_add_u32 s{S_HOFF}, s{S_HOFF}, 4096")
        return L
    for l in request(0) + request(1): a(l)
    for r in range(96): a(f"v_mov_b32 v{ACC+r}, 0")
    stamp_at(1)
    def compute(ring):
        frags = [(k, p, t) for k in range(4) for p in range(3) for t in range(2)]
        def reads(i):
            k, p, t = frags[i]
            r = WR + 4 * (i % D)
            off = p * 8192 + k * 2048
            return [f"ds_read_b64_tr_b16 v[{r}:{r+1}], v{V_B0+t} offset:{off}",
                    f"ds_read_b64_tr_b16 v[{r+2}:{r+3}], v{V_B0+t} offset:{off+512}"]
        for t in range(2): a(f"v_add_u32 v{V_B0+t}, {ring*DSLOT}, v{V_LB+t}")
        for i in range(D):
            for l in reads(i): a(l)
        return frags, reads
    a(f"s_mov_b32 s{S_N}, 0")
    a.label(f"{name}_loop")
    for ring in range(3):
        if ring == 2:
            lw = a.uid(name + "_lw")
            a(f"s_cmp_lt_u32 s{S_N}, {NSLOT - 3}")
            a(f"s_cbranch_scc1 {lw}")
            a("s_waitcnt vmcnt(0)")
            a.label(lw)
        a("s_waitcnt vmcnt(10)")
        a("s_barrier")
        frags, reads = compute(ring)
        lab = a.uid(name + "_noreq")
        a(f"s_cmp_ge_u32 s{S_N}, {NSLOT - 2 - ring}")
        a(f"s_cbranch_scc1 {lab}")
        for l in request((ring + 2) % 3): a(l)
        a(f"s_branch {lab}_j")
        a.label(lab)
        a.label(f"{lab}_j")
        n = len(frags)
        for i in range(n):
            k, p, t = frags[i]
            if i % 2 == 0:
                a(f"s_waitcnt lgkmcnt({2 * (min(i + D - 1, n - 1) - (i + 1))})")
            acc = ACC + 16 * (2 * p + t)
            r = WR + 4 * (i % D); h = HB + 16 * ring + 4 * k
            a(f"v_mfma_f32_32x32x16_bf16 v[{acc}:{acc+15}], v[{r}:{r+3}], v[{h}:{h+3}], v[{acc}:{acc+15}]")
            if i + D < n:
                for l in reads(i + D): a(l)
    a(f"s_add_u32 s{S_N}, s{S_N}, 3")
    a(f"s_cmp_lt_u32 s{S_N}, {NSLOT}")
    a(f"s_cbranch_scc1 {name}_loop")
    stamp_at(2)
    a("s_nop 7"); a("s_nop 7")
    for c in range(6):
        for q in range(4):
            r = ACC + 16 * c + 4 * q
            a(f"buffer_store_dwordx4 v[{r}:{r+3}], v{V_HL}, s[{SRD_G}:{SRD_G+3}], s{S_GOFF} offen offset:{q*1024}")
        a(f"s_add_u32 s{S_GOFF}, s{S_GOFF}, 4096")
    stamp_at(3); stamp_at(4); stamp_at(5)
    if stamp:
        a(f"s_memrealtime s[{S_ST+14}:{S_ST+15}]")
        emit_stamp_store(a, S_ST, 8)
```

```python
class Asm:
    def __init__(self):
        self.lines = []
        self._uid = 0
    def __call__(self, s):
        for l in s.split("\n"):
            self.lines.append("    " + l.strip())
    def label(self, name):
        self.lines.append(name + ":")
    def raw(self, s):
        self.lines.append(s)
    def uid(self, prefix):
        self._uid += 1
        return f"{prefix}_{self._uid}"
    def text(self):
        return "\n".join(self.lines) + "\n"

def vr(base, n=1):
    return f"v{base}" if n == 1 else f"v[{base}:{base+n-1}]"
def sr(base, n=1):
    return f"s{base}" if n == 1 else f"s[{base}:{base+n-1}]"

def kernel_header(a, name):
    a.raw(".text")
    a.raw(f".globl {name}")
    a.raw(".p2align 8")
    a.raw(f".type {name},@function")
    a.label(name)

def kernel_descriptor(name, vgpr, accum, sgpr=96):
    return f""".section .rodata,"a"
.p2align 6
.amdhsa_kernel {name}
  .amdhsa_next_free_vgpr {vgpr}
  .amdhsa_next_free_sgpr {sgpr}
  .amdhsa_accum_offset {accum}
  .amdhsa_group_segment_fixed_size 0
  .amdhsa_kernarg_size 80
  .amdhsa_user_sgpr_count 2
  .amdhsa_user_sgpr_kernarg_segment_ptr 1
  .amdhsa_system_sgpr_workgroup_id_x 1
  .amdhsa_float_denorm_mode_32 3
.end_amdhsa_kernel
"""

def make_srd(a, s, base_lo, base_hi, off, size):
    if off:
        a(f"s_add_u32 s{s}, s{base_lo}, {hex(off)}")
        a(f"s_addc_u32 s{s+1}, s{base_hi}, 0")
    else:
        a(f"s_mov_b32 s{s}, s{base_lo}")
        a(f"s_mov_b32 s{s+1}, s{base_hi}")
    a(f"s_mov_b32 s{s+2}, {hex(size)}")
    a(f"s_mov_b32 s{s+3}, 0x20000")

def interleave(main, fillers, start=0, end=None):
    n = len(main)
    if end is None: end = n
    span = max(end - start, 1)
    out = []
    done = 0
    for i, g in enumerate(main):
        out += g
        if start <= i < end:
            want = (len(fillers) * (i - start + 1) + span - 1) // span
            while done < want and done < len(fillers):
                out.append(fillers[done]); done += 1
    out += fillers[done:]
    return out

S_TOK, D, F, NH, DH = 2048, 576, 4608, 32, 18
HEADB = 2048 * 48
WS_Q,  SZ_Q  = 0x0000000, 32 * HEADB
WS_K         = WS_Q + SZ_Q
WS_VT, SZ_VT = 0x0600000, 576 * 2048 * 2
WS_O,  SZ_O  = 0x0900000, 2048 * 576 * 2
WS_H,  SZ_H  = 0x1000000, 2048 * 4608 * 2
WS_G,  SZ_G1 = 0x2400000, 2048 * 576 * 4
WS_STAMP = 0x8000000
```

```python
import sys, argparse
sys.path.insert(0, 'gen')
from lib import *
import k1
HEADER = open('recurrent_scan__mha_block__glu_gated_swiglu__prompt.s.ref').read().split('; Override launch')[0]
def build(kernels, launches):
    s = HEADER
    for (n, g, b, lds) in launches:
        s += f"; @launch kernel={n} grid=({g},1,1) block=({b},1,1) lds={lds}\n"
    s += '.amdgcn_target "amdgcn-amd-amdhsa--gfx950"\n'
    for k in kernels: s += k
    return s
if __name__ == "__main__":
    ap = argparse.ArgumentParser()
    ap.add_argument('-o', default='out.s')
    ap.add_argument('--stamp', default='')
    ap.add_argument('--only', default='')
    ap.add_argument('--D', type=int, default=6)
    ap.add_argument('--nopk', action='store_true')
    ap.add_argument('--dbg', default='')
    ap.add_argument('--PD', type=int, default=3)
    a = ap.parse_args()
    kernels, launches = [], []
    sel = a.only.split(',') if a.only else (['k1', 'k2', 'k3'] if any(k in a.dbg for k in ('nofuse', 'noattn', 'nodown')) else ['k1', 'k2'])
    if 'k1' in sel:
        kernels.append(k1.gen_k1(D=a.D, stamp=('k1' in a.stamp), dbg=a.dbg, PD=a.PD)); launches.append(("k1_kernel", 256, 512, k1.LDS_BYTES if "stage" in a.dbg else k1.STG))
    if 'k2' in sel:
        import k2
        kernels.append(k2.gen_k2(stamp=('k2' in a.stamp), dbg=a.dbg)); launches.append(k2.LAUNCH)
    if 'kd' in sel:
        import kd
        kernels.append(kd.gen_kd(stamp=('kd' in a.stamp), dbg=a.dbg)); launches.append(kd.LAUNCH)
    if 'k3' in sel:
        import k3
        kernels.append(k3.gen_k3(stamp=('k3' in a.stamp), dbg=a.dbg)); launches.append(k3.LAUNCH)
    open(a.o, 'w').write(build(kernels, launches))
```

```python
from lib import *
import struct

SLOT = 36864
REG = 18432
LOG2E = 1.4426950408889634

def f2h(x):
    return hex(struct.unpack("<I", struct.pack("<f", x))[0])

def perm_pi(a, dst, src, t0):
    a(f"v_and_b32 v{dst}, 0x13, v{src}")
    a(f"v_and_b32 v{t0}, 4, v{src}")
    a(f"v_lshl_or_b32 v{dst}, v{t0}, 1, v{dst}")
    a(f"v_and_b32 v{t0}, 8, v{src}")
    a(f"v_lshrrev_b32 v{t0}, 1, v{t0}")
    a(f"v_or_b32 v{dst}, v{dst}, v{t0}")

def tr_lane_base128(a, dst, lane, t0, t1):
    a(f"v_lshrrev_b32 v{t0}, 5, v{lane}")
    a(f"v_lshlrev_b32 v{t0}, 3, v{t0}")
    a(f"v_bfe_u32 v{t1}, v{lane}, 2, 2")
    a(f"v_add_u32 v{t0}, v{t0}, v{t1}")
    a(f"v_lshlrev_b32 v{dst}, 7, v{t0}")
    a(f"v_bfe_u32 v{t0}, v{lane}, 3, 1")
    a(f"v_lshl_add_u32 v{dst}, v{t0}, 6, v{dst}")
    a(f"v_bfe_u32 v{t0}, v{lane}, 4, 1")
    a(f"v_lshl_add_u32 v{dst}, v{t0}, 5, v{dst}")
    a(f"v_and_b32 v{t0}, 1, v{lane}")
    a(f"v_lshl_add_u32 v{dst}, v{t0}, 4, v{dst}")
    a(f"v_bfe_u32 v{t0}, v{lane}, 1, 1")
    a(f"v_lshl_add_u32 v{dst}, v{t0}, 3, v{dst}")

def dma_lane_offset128(a, dst, lane, stride_sgpr, t0, t1):
    a(f"v_lshrrev_b32 v{t0}, 3, v{lane}")
    a(f"v_mul_lo_u32 v{dst}, v{t0}, s{stride_sgpr}")
    a(f"v_bfe_u32 v{t0}, v{lane}, 4, 1")
    a(f"v_lshlrev_b32 v{t0}, 2, v{t0}")
    a(f"v_and_b32 v{t1}, 7, v{lane}")
    a(f"v_xor_b32 v{t0}, v{t0}, v{t1}")
    a(f"v_lshl_add_u32 v{dst}, v{t0}, 4, v{dst}")

def stage_rows_via_lds(a, XB, srd, s_rowbyte0, rowbytes, s_lds, v_lane, v_pi, v_hi, tmpv, s_tmp, nchunks, after_issue, per_chunk, npf):
    pass

def x_stage(a, chunks, s_tbw, s_t0, srd, v_lane, s_soff, s_lds, s_cnt):
    V_DA, V_DB = 6, 7
    a(f"v_lshrrev_b32 v{V_DA}, 3, v{v_lane}")
    a(f"s_movk_i32 s{s_soff}, 1152")
    a(f"v_mul_lo_u32 v{V_DA}, v{V_DA}, s{s_soff}")
    a(f"v_lshrrev_b32 v8, 4, v{v_lane}")
    a(f"v_and_b32 v9, 7, v{v_lane}")
    a(f"v_xor_b32 v8, v8, v9")
    a(f"v_xor_b32 v9, 4, v8")
    a(f"v_lshl_add_u32 v{V_DB}, v9, 4, v{V_DA}")
    a(f"v_lshl_add_u32 v{V_DA}, v8, 4, v{V_DA}")
    a(f"s_mul_i32 s{s_soff}, s{s_t0}, 1152")
    a(f"s_mul_i32 s{s_lds}, s{s_tbw}, {SLOT}")
    for c in chunks:
        for i in range(4):
            if i == 0: a(f"s_add_u32 m0, s{s_lds}, {c*4096}")
            else: a(f"s_add_u32 m0, m0, 1024")
            a(f"s_add_u32 s{s_cnt}, s{s_soff}, {c*128 + i*8*1152}")
            a(f"buffer_load_dwordx4 v{V_DA if i % 2 == 0 else V_DB}, s[{srd}:{srd+3}], s{s_cnt} offen lds")

def emit_stamp_store(a, s0, n):
    a("s_waitcnt lgkmcnt(0)")
    a("s_lshl_b32 s46, s2, 3")
    a("s_add_u32 s46, s46, s3")
    a("s_lshl_b32 s46, s46, 6")
    a(f"s_add_u32 s56, s12, {hex(WS_STAMP)}")
    a("s_addc_u32 s57, s13, 0")
    a("s_add_u32 s56, s56, s46")
    a("s_addc_u32 s57, s57, 0")
    a("v_mov_b32 v1, 0")
    for i in range(n):
        a(f"v_mov_b32 v2, s{s0+2*i}")
        a(f"v_mov_b32 v3, s{s0+2*i+1}")
        a(f"global_store_dwordx2 v1, v[2:3], s[56:57] offset:{8*i}")
        a("s_nop 1")
    a("s_waitcnt vmcnt(0)")

def gen_k1(name="k1_kernel", D=6, stamp=False, dbg="", PD=6):
    R = 8
    STF = " sc0 sc1"
    for k, v in (("hplain", ""), ("hsc1", " sc1"), ("hsc0", " sc0"), ("hnt", " nt"), ("hntsc1", " sc1 nt")):
        if k + "," in dbg + ",": STF = v
    a = Asm()
    kernel_header(a, name)
    END = name + "_end"
    S_WAVE, S_G, S_RB = 3, 14, 15
    SRD_X, SRD_W, SRD_WQ, SRD_H, SRD_QK, SRD_VT = 16, 20, 24, 28, 32, 36
    S_NQUAD, S_Q0, S_NDT, S_DT0 = 40, 41, 42, 43
    S_SOFF, S_LDS, S_CNT, S_TMP, S_TMP2 = 44, 45, 46, 47, 48
    S_HOFF, S_TILE, S_EPMUL, S_EPOFF = 49, 50, 51, 52
    S_ROT = 54
    SRD_EP = 56
    S_ST = 60
    V_LANE, V_N, V_HI, V_T0, V_T1 = 1, 2, 3, 4, 5
    V_LB, V_RA = 6, 8
    V_HADDR, V_QKADDR, V_VTADDR, V_EPADDR, V_PI = 11, 12, 13, 14, 15
    XB, ACC, WR = 16, 160, 224
    TMP = WR + 4 * D
    assert TMP + 8 <= 256
    def stamp_at(i):
        if stamp: a(f"s_memtime s[{S_ST+2*i}:{S_ST+2*i+1}]")
    a("s_cmp_ge_u32 s2, 256")
    a(f"s_cbranch_scc1 {END}")
    a("s_load_dwordx4 s[4:7], s[0:1], 0")
    a("s_load_dwordx4 s[8:11], s[0:1], 32")
    a("s_load_dwordx2 s[12:13], s[0:1], 72")
    stamp_at(0)
    if stamp: a(f"s_memrealtime s[{S_ST+12}:{S_ST+13}]")
    a("v_lshrrev_b32 v1, 6, v0")
    a("s_and_b32 s14, s2, 7")
    a(f"v_readfirstlane_b32 s{S_WAVE}, v1")
    a("s_lshr_b32 s15, s2, 3")
    a(f"s_lshr_b32 s{S_TMP}, s14, 1")
    a(f"s_lshl_b32 s{S_TMP}, s{S_TMP}, 2")
    a(f"s_lshr_b32 s{S_TMP2}, s15, 3")
    a(f"s_add_u32 s{S_TMP}, s{S_TMP}, s{S_TMP2}")
    a("s_and_b32 s14, s14, 1")
    a("s_lshl_b32 s14, s14, 3")
    a("s_and_b32 s15, s15, 7")
    a(f"s_add_u32 s{S_RB}, s14, s15")
    a(f"s_mov_b32 s{S_G}, s{S_TMP}")
    a(f"v_and_b32 v{V_LANE}, 63, v0")
    a(f"s_lshr_b32 s{S_TMP}, s{S_G}, 1")
    a(f"s_and_b32 s{S_TMP2}, s{S_G}, 1")
    a(f"s_sub_u32 s{S_NQUAD}, 5, s{S_TMP2}")
    a(f"s_mul_i32 s{S_Q0}, s{S_TMP}, 9")
    a(f"s_mul_i32 s{S_CNT}, s{S_TMP2}, 5")
    a(f"s_add_u32 s{S_Q0}, s{S_Q0}, s{S_CNT}")
    a(f"s_min_u32 s{S_CNT}, s{S_TMP}, 3")
    a(f"s_mul_i32 s{S_DT0}, s{S_TMP}, 3")
    a(f"s_add_u32 s{S_DT0}, s{S_DT0}, s{S_CNT}")
    a(f"s_add_u32 s{S_DT0}, s{S_DT0}, s{S_TMP2}")
    a(f"s_cmp_lt_u32 s{S_TMP}, 3")
    a(f"s_cselect_b32 s{S_NDT}, 3, 2")
    a(f"s_cmp_eq_u32 s{S_TMP2}, 0")
    a(f"s_cselect_b32 s{S_NDT}, 1, s{S_NDT}")
    a("s_waitcnt lgkmcnt(0)")
    if "pst" in dbg: stamp_at(1)
    a(f"s_cmp_ge_u32 s{S_WAVE}, 4")
    a(f"s_cbranch_scc1 {name}_loader")

    make_srd(a, SRD_X, 4, 5, 0, 2048 * 1152)
    a(f"v_and_b32 v{V_N}, 31, v{V_LANE}")
    a(f"v_lshrrev_b32 v{V_HI}, 5, v{V_LANE}")
    perm_pi(a, V_PI, V_N, V_T1)
    a(f"s_lshl_b32 s{S_TMP}, s{S_RB}, 2")
    a(f"s_add_u32 s{S_TMP}, s{S_TMP}, s{S_WAVE}")
    a(f"s_lshl_b32 s{S_TMP2}, s{S_TMP}, 5")
    STARTS = (0, 2, 4, 7)
    a(f"s_and_b32 s{S_ROT}, s{S_G}, 3")
    for j, c0 in enumerate(STARTS):
        lab = f"{name}_xs{j}"
        if j > 0: a.label(lab)
        if j < 3:
            a(f"s_cmp_eq_u32 s{S_ROT}, {j}")
            a(f"s_cbranch_scc0 {name}_xs{j+1}")
        x_stage(a, [(c0 + i) % 9 for i in range(9)], S_WAVE, S_TMP2, SRD_X, V_LANE, S_SOFF, S_LDS, S_CNT)
        if j < 3: a(f"s_branch {name}_xsd")
    a.label(f"{name}_xsd")
    stamp_at(2 if "pst" in dbg else 1)
    make_srd(a, SRD_H, 12, 13, WS_H, SZ_H)
    make_srd(a, SRD_QK, 12, 13, WS_QK, SZ_QK)
    make_srd(a, SRD_VT, 12, 13, WS_VT, SZ_VT)
    a(f"v_add_u32 v{V_T1}, s{S_TMP2}, v{V_PI}")
    a(f"v_lshlrev_b32 v{V_QKADDR}, 5, v{V_T1}")
    a(f"v_lshl_add_u32 v{V_QKADDR}, v{V_HI}, 4, v{V_QKADDR}")
    a(f"v_lshlrev_b32 v{V_VTADDR}, 12, v{V_PI}")
    a(f"v_lshl_add_u32 v{V_VTADDR}, v{V_HI}, 4, v{V_VTADDR}")
    a(f"s_lshl_b32 s{S_SOFF}, s{S_TMP2}, 1")
    a(f"v_add_u32 v{V_VTADDR}, s{S_SOFF}, v{V_VTADDR}")
    a(f"v_lshlrev_b32 v{V_HADDR}, 4, v{V_LANE}")
    a(f"s_mul_i32 s{S_HOFF}, s{S_TMP}, {288*1024}")
    a(f"s_lshl_b32 s{S_SOFF}, s{S_Q0}, 12")
    a(f"s_add_u32 s{S_HOFF}, s{S_HOFF}, s{S_SOFF}")
    tr_lane_base128(a, V_LB, V_LANE, V_T0, V_T1)
    a(f"v_xor_b32 v{V_LB+1}, 64, v{V_LB}")
    SUM, SQ, ONES = ACC, ACC + 2, ACC + 4
    for i in range(4): a(f"v_mov_b32 v{SUM+i}, 0")
    a(f"v_mov_b32 v{ONES}, 0x3f803f80")
    XA = ACC + 8
    a(f"v_lshrrev_b32 v{XA+4}, 1, v{V_PI}")
    a(f"v_and_b32 v{XA+4}, 7, v{XA+4}")
    a(f"v_xor_b32 v{XA+4}, v{XA+4}, v{V_HI}")
    a(f"v_lshlrev_b32 v{XA+5}, 7, v{V_PI}")
    a(f"v_add_u32 v{XA+5}, s{S_LDS}, v{XA+5}")
    for sub in range(4):
        a(f"v_xor_b32 v{XA+sub}, {2*sub}, v{XA+4}")
        a(f"v_lshl_add_u32 v{XA+sub}, v{XA+sub}, 4, v{XA+5}")
    def stats(c):
        for r in range(XB + 16 * c, XB + 16 * c + 16):
            a(f"v_dot2c_f32_bf16 v{SUM + (r & 1)}, v{r}, v{ONES}")
            a(f"v_dot2c_f32_bf16 v{SQ + (r & 1)}, v{r}, v{r}")
    def xreads(c):
        for sub in range(4):
            r = XB + 16 * c + 4 * sub
            a(f"ds_read_b128 v[{r}:{r+3}], v{XA+sub} offset:{c*4096}")
    for j, c0 in enumerate(STARTS):
        if j > 0: a.label(f"{name}_xr{j}")
        if j < 3:
            a(f"s_cmp_eq_u32 s{S_ROT}, {j}")
            a(f"s_cbranch_scc0 {name}_xr{j+1}")
        order = [(c0 + i) % 9 for i in range(9)]
        for i, c in enumerate(order):
            a(f"s_waitcnt vmcnt({32 - 4*i})")
            if "pst" in dbg and i == 0: stamp_at(3)
            if "pst" in dbg and i == 8: stamp_at(4)
            xreads(c)
            if i > 0:
                a("s_waitcnt lgkmcnt(4)")
                stats(order[i - 1])
        a("s_waitcnt lgkmcnt(0)")
        a("s_barrier")
        if "pst" in dbg: stamp_at(5)
        stats(order[8])
        if j < 3: a(f"s_branch {name}_xrd")
    a.label(f"{name}_xrd")
    if "pst" not in dbg: stamp_at(2)
    a("s_nop 2")
    a(f"v_add_f32 v{SUM}, v{SUM}, v{SUM+1}")
    a(f"v_add_f32 v{SQ}, v{SQ}, v{SQ+1}")
    a("s_nop 0")
    a(f"v_mov_b32 v{SUM+1}, v{SUM}")
    a(f"v_mov_b32 v{SQ+1}, v{SQ}")
    a("s_nop 1")
    a(f"v_permlane32_swap_b32 v{SUM}, v{SUM+1}")
    a(f"v_permlane32_swap_b32 v{SQ}, v{SQ+1}")
    a("s_nop 1")
    a(f"v_add_f32 v{SUM}, v{SUM}, v{SUM+1}")
    a(f"v_add_f32 v{SQ}, v{SQ}, v{SQ+1}")
    a(f"v_mul_f32 v{SUM}, {f2h(1.0/576)}, v{SUM}")
    a(f"v_mul_f32 v{SQ}, {f2h(1.0/576)}, v{SQ}")
    a(f"v_fma_f32 v{SQ}, -v{SUM}, v{SUM}, v{SQ}")
    a(f"v_max_f32 v{SQ}, 0, v{SQ}")
    a(f"v_add_f32 v{SQ}, {f2h(1e-5)}, v{SQ}")
    a(f"v_rsq_f32 v{SQ}, v{SQ}")
    a("s_nop 0")
    RR, CC = TMP + 4, TMP + 6
    a(f"v_mul_f32 v{RR}, {f2h(LOG2E)}, v{SQ}")
    a(f"v_mov_b32 v{RR+1}, v{RR}")
    a(f"v_mul_f32 v{CC}, v{SUM}, v{RR}")
    a(f"v_sub_f32 v{CC}, 0, v{CC}")
    a(f"v_mov_b32 v{CC+1}, v{CC}")
    def normalise(ks):
        L = []
        T = TMP
        for r in range(XB + 4 * ks, XB + 4 * ks + 4, 2):
            for j in range(2):
                L.append(f"v_lshlrev_b32 v{T+2*j}, 16, v{r+j}")
                L.append(f"v_and_b32 v{T+2*j+1}, 0xffff0000, v{r+j}")
            for j in range(2):
                L.append(f"v_pk_fma_f32 v[{T+2*j}:{T+2*j+1}], v[{T+2*j}:{T+2*j+1}], v[{RR}:{RR+1}], v[{CC}:{CC+1}]")
            for j in range(2):
                L.append(f"v_cvt_pk_bf16_f32 v{r+j}, v{T+2*j}, v{T+2*j+1}")
        return L
    NPRE = 3 if "jit" in dbg else 36
    for ks in range(NPRE):
        for l in normalise(ks): a(l)
    if "pst" not in dbg: stamp_at(3)

    def base_reg(slot): return V_RA + (slot & 1)
    def set_base(slot, t): return f"v_add_u32 v{base_reg(slot)}, {slot*SLOT}, v{V_LB+t}"
    def frag_reads(i, slot):
        r = WR + 4 * (i % D)
        j = i % 18
        off = (j & 1) * REG + (j >> 1) * 2048
        return [f"ds_read_b64_tr_b16 v[{r}:{r+1}], v{base_reg(slot)} offset:{off}",
                f"ds_read_b64_tr_b16 v[{r+2}:{r+3}], v{base_reg(slot)} offset:{off+512}"]
    def silu_epilogue(st):
        g, u = st, st + 16
        L = []
        for r in range(0, 16, 2):
            t = TMP + 2 * ((r // 2) % 4)
            L.append(f"v_exp_f32 v{t}, -v{g+r}")
            L.append(f"v_exp_f32 v{t+1}, -v{g+r+1}")
            L.append(f"v_mul_f32 v{u+r}, v{g+r}, v{u+r}")
            L.append(f"v_mul_f32 v{u+r+1}, v{g+r+1}, v{u+r+1}")
            L.append(f"v_add_f32 v{t}, 1.0, v{t}")
            L.append(f"v_add_f32 v{t+1}, 1.0, v{t+1}")
            L.append(f"v_rcp_f32 v{t}, v{t}")
            L.append(f"v_rcp_f32 v{t+1}, v{t+1}")
            if r > 0:
                L.append(f"v_cvt_pk_bf16_f32 v{u + r//2 - 1}, v{g+r-2}, v{g+r-1}")
            else:
                L.append("s_nop 0")
            L.append(f"v_mul_f32 v{g+r}, v{u+r}, v{t}")
            L.append(f"v_mul_f32 v{g+r+1}, v{u+r+1}, v{t+1}")
            if r == 8:
                L.append(f"buffer_store_dwordx4 v[{u}:{u+3}], v{V_HADDR}, s[{SRD_H}:{SRD_H+3}], s{S_HOFF} offen{STF}")
        L.append(f"v_cvt_pk_bf16_f32 v{u+7}, v{g+14}, v{g+15}")
        L.append(f"buffer_store_dwordx4 v[{u+4}:{u+7}], v{V_HADDR}, s[{SRD_H}:{SRD_H+3}], s{S_HOFF} offen offset:1024{STF}")
        L.append(f"s_add_u32 s{S_HOFF}, s{S_HOFF}, 2048")
        return L
    S_EPOFF2 = 53
    def tile_epilogue(acc):
        L = []
        for r in range(0, 16, 2):
            L.append(f"v_mul_f32 v{acc+r}, s{S_EPMUL}, v{acc+r}")
            L.append(f"v_mul_f32 v{acc+r+1}, s{S_EPMUL}, v{acc+r+1}")
            L.append(f"v_cvt_pk_bf16_f32 v{acc + r//2}, v{acc+r}, v{acc+r+1}")
        L.append(f"buffer_store_dwordx4 v[{acc}:{acc+3}], v{V_EPADDR}, s[{SRD_EP}:{SRD_EP+3}], s{S_EPOFF} offen{STF}")
        L.append(f"buffer_store_dwordx4 v[{acc+4}:{acc+7}], v{V_EPADDR}, s[{SRD_EP}:{SRD_EP+3}], s{S_EPOFF2} offen{STF}")
        return L
    def start_reads(slot, t, barrier):
        if barrier: a("s_barrier")
        a(set_base(slot, t))
        for i in range(D):
            for l in frag_reads(i, slot): a(l)
    def emit_job(slot0, t, nxt, mfma_of, fillers, placed=None):
        groups = []
        total = 36 + (D if nxt else 0)
        for i in range(36):
            g = []
            if i % 2 == 0:
                issued_upto = min(i + D - 1, total - 1)
                g.append(f"s_waitcnt lgkmcnt({2 * (issued_upto - (i + 1))})")
            g.append(mfma_of(i))
            j = i + D
            if j < total:
                if j == 18:
                    if t == 0: g.append("s_barrier")
                    g.append(set_base(slot0 + 1, t))
                if j == 36:
                    if nxt[2]: g.append("s_barrier")
                    g.append(set_base(nxt[0], nxt[1]))
                slot = slot0 + (j // 18) if j < 36 else nxt[0]
                g += frag_reads(j % 36, slot)
            groups.append(g)
        if placed:
            for pos, ins in placed: groups[min(pos, 35)] += ins
        if "noepi" in dbg: fillers = []
        for l in interleave(groups, fillers, start=3, end=34):
            if "nostore" in dbg and l.startswith("buffer_store"): continue
            if "notr" in dbg and (l.startswith("ds_read") or l.startswith("s_waitcnt lgkm")): continue
            if "halftr" in dbg and l.startswith("ds_read") and ("offset:" in l) and (int(l.split("offset:")[1]) // 2048) % 2 == 1: continue
            a(l)
    assert 36 % D == 0 and 18 % D == 0
    def pair_mfma(st, kh):
        def f(i):
            s, j = divmod(i, 18)
            ks = 18 * kh + 9 * s + (j >> 1)
            acc = st + 16 * (j & 1)
            c = "0" if (kh == 0 and i < 2) else f"v[{acc}:{acc+15}]"
            r = WR + 4 * (i % D)
            return f"v_mfma_f32_32x32x16_bf16 v[{acc}:{acc+15}], v[{r}:{r+3}], v[{XB+4*ks}:{XB+4*ks+3}], {c}"
        return f
    def tile_mfma(acc, swap):
        def f(i):
            s, j = divmod(i, 18)
            ks = 18 * s + 9 * (j & 1) + (j >> 1)
            c = "0" if i == 0 else f"v[{acc}:{acc+15}]"
            r = WR + 4 * (i % D)
            w = f"v[{r}:{r+3}]"; x = f"v[{XB+4*ks}:{XB+4*ks+3}]"
            A, B = (x, w) if swap else (w, x)
            return f"v_mfma_f32_32x32x16_bf16 v[{acc}:{acc+15}], {A}, {B}, {c}"
        return f
    SA, SB = ACC, ACC + 32
    start_reads(0, 0, True)
    def jit(first, last, lead):
        return [(max(0, 2 * (ks - first) + lead), normalise(ks)) for ks in range(first, last)]
    emit_job(0, 0, (0, 1, False), pair_mfma(SA, 0), [], placed=[(2 * (ks - NPRE), normalise(ks)) for ks in range(min(NPRE, 18), 18)])
    emit_job(0, 1, (2, 0, True), pair_mfma(SB, 0), [], placed=[(2 * (ks - 18), normalise(ks)) for ks in range(max(NPRE, 18), 36)])
    a(f"s_mov_b32 s{S_CNT}, s{S_NQUAD}")
    a(f"s_branch {name}_q2")
    a.label(f"{name}_quadloop")
    emit_job(0, 0, (0, 1, False), pair_mfma(SA, 0), silu_epilogue(SB))
    emit_job(0, 1, (2, 0, True), pair_mfma(SB, 0), [])
    a.label(f"{name}_q2")
    emit_job(2, 0, (2, 1, False), pair_mfma(SA, 1), [])
    emit_job(2, 1, (0, 0, True), pair_mfma(SB, 1), silu_epilogue(SA))
    a(f"s_sub_u32 s{S_CNT}, s{S_CNT}, 1")
    a(f"s_cmp_lg_u32 s{S_CNT}, 0")
    a(f"s_cbranch_scc1 {name}_quadloop")
    if "pst" not in dbg: stamp_at(4)
    a(f"s_lshl_b32 s{S_TILE}, s{S_DT0}, 1")
    QSC = 1.0 / (18 ** 0.5)
    def latch_epilogue():
        lv, le, lq = a.uid(name + "_lv"), a.uid(name + "_le"), a.uid(name + "_lq")
        a(f"s_cmp_ge_u32 s{S_TILE}, 36")
        a(f"s_cbranch_scc1 {lv}")
        a(f"s_lshl_b32 s{S_EPOFF}, s{S_TILE}, 17")
        a(f"s_add_u32 s{S_EPOFF2}, s{S_EPOFF}, {GRP}")
        a(f"s_mov_b32 s{S_EPMUL}, {f2h(QSC)}")
        a(f"s_cmp_lt_u32 s{S_TILE}, 18")
        a(f"s_cbranch_scc1 {lq}")
        a(f"s_mov_b32 s{S_EPMUL}, {f2h(1.0/LOG2E)}")
        a.label(lq)
        make_srd(a, SRD_EP, 12, 13, WS_QK, SZ_QK)
        a(f"v_mov_b32 v{V_EPADDR}, v{V_QKADDR}")
        a(f"s_branch {le}")
        a.label(lv)
        a(f"s_sub_u32 s{S_EPOFF}, s{S_TILE}, 36")
        a(f"s_lshl_b32 s{S_EPOFF}, s{S_EPOFF}, 17")
        a(f"s_add_u32 s{S_EPOFF2}, s{S_EPOFF}, 32")
        a(f"s_mov_b32 s{S_EPMUL}, {f2h(1.0/LOG2E)}")
        make_srd(a, SRD_EP, 12, 13, WS_VT, SZ_VT)
        a(f"v_mov_b32 v{V_EPADDR}, v{V_VTADDR}")
        a.label(le)
        a(f"s_add_u32 s{S_TILE}, s{S_TILE}, 1")
    ring = [SA, SA + 16, SB, SB + 16]
    for d in range(3):
        slot0 = (2 * d) % 4
        if d > 0:
            a(f"s_cmp_le_u32 s{S_NDT}, {d}")
            a(f"s_cbranch_scc1 {name}_fin{d}")
            start_reads(slot0, 0, True)
        for t in range(2):
            k = 2 * d + t
            acc = ring[k % 4]
            fill = silu_epilogue(SB) if k == 0 else tile_epilogue(ring[(k - 1) % 4])
            nxt = (slot0, 1, False) if t == 0 else None
            lv, le = a.uid(name + "_v"), a.uid(name + "_e")
            a(f"s_cmp_ge_u32 s{S_TILE}, 36")
            a(f"s_cbranch_scc1 {lv}")
            emit_job(slot0, t, nxt, tile_mfma(acc, False), fill)
            a(f"s_branch {le}")
            a.label(lv)
            emit_job(slot0, t, nxt, tile_mfma(acc, True), fill)
            a.label(le)
            latch_epilogue()
    for d in (3, 2, 1):
        if d < 3: a.label(f"{name}_fin{d}")
        a("s_nop 7"); a("s_nop 3")
        for l in tile_epilogue(ring[(2 * d - 1) % 4]): a(l)
        a(f"s_branch {name}_done")
    a.label(f"{name}_done")
    if "pst" not in dbg: stamp_at(5)
    if stamp:
        a(f"s_memrealtime s[{S_ST+14}:{S_ST+15}]")
        emit_stamp_store(a, S_ST, 8)
    a("s_endpgm")

    a.label(f"{name}_loader")
    lz = a.uid(name + "_lz")
    a("s_cmp_eq_u32 s2, 0")
    a(f"s_cbranch_scc0 {lz}")
    make_srd(a, 28, 12, 13, WS_F, SZ_F)
    a(f"v_lshlrev_b32 v20, 4, v0")
    a(f"v_subrev_u32 v20, 4096, v20")
    for r in range(4): a(f"v_mov_b32 v{24+r}, 0")
    a(f"buffer_store_dwordx4 v[24:27], v20, s[28:31], 0 offen sc0 sc1")
    a.label(lz)
    S_NS, S_N, S_M, S_B13, S_BQ, S_LB, S_PFI = 44, 45, 49, 50, 51, 52, 53
    S_SO = 54
    V_L13, V_LQ, V_P13, V_PQ = 10, 11, 12, 13
    a(f"s_sub_u32 s{S_WAVE}, s{S_WAVE}, 4")
    a(f"s_cmp_ge_u32 s{S_WAVE}, 2")
    a(f"s_cselect_b32 s{SRD_W}, s10, s8")
    a(f"s_cselect_b32 s{SRD_W+1}, s11, s9")
    a(f"s_mov_b32 s{SRD_W+2}, {hex(576*4608*2)}")
    a(f"s_mov_b32 s{SRD_W+3}, 0x20000")
    make_srd(a, SRD_WQ, 6, 7, 0, 576 * 1728 * 2)
    a(f"s_movk_i32 s{S_TMP}, 9216")
    dma_lane_offset128(a, V_L13, V_LANE, S_TMP, V_T0, V_T1)
    a(f"s_movk_i32 s{S_TMP2}, 3456")
    dma_lane_offset128(a, V_LQ, V_LANE, S_TMP2, V_T0, V_T1)
    a(f"s_and_b32 s{S_PFI}, s{S_RB}, 7")
    a(f"s_mul_i32 s{S_PFI}, s{S_PFI}, 9")
    a(f"v_add_u32 v{V_T0}, s{S_PFI}, v{V_LANE}")
    a(f"v_mul_lo_u32 v{V_P13}, v{V_T0}, s{S_TMP}")
    a(f"v_mul_lo_u32 v{V_PQ}, v{V_T0}, s{S_TMP2}")
    a(f"v_cmp_gt_u32 vcc, 9, v{V_LANE}")
    a(f"v_mov_b32 v{V_T1}, 0x7fffffff")
    a("s_nop 1")
    a(f"v_cndmask_b32 v{V_P13}, v{V_T1}, v{V_P13}, vcc")
    a(f"v_cndmask_b32 v{V_PQ}, v{V_T1}, v{V_PQ}, vcc")
    a(f"s_and_b32 s{S_TMP}, s{S_WAVE}, 1")
    a(f"s_mul_i32 s{S_B13}, s{S_TMP}, {72*9216}")
    a(f"s_lshl_b32 s{S_TMP2}, s{S_Q0}, 7")
    a(f"s_add_u32 s{S_B13}, s{S_B13}, s{S_TMP2}")
    a(f"s_mul_i32 s{S_BQ}, s{S_TMP}, {72*3456}")
    a(f"s_lshr_b32 s{S_TMP}, s{S_WAVE}, 1")
    a(f"s_mul_i32 s{S_TMP}, s{S_TMP}, {144*3456}")
    a(f"s_add_u32 s{S_BQ}, s{S_BQ}, s{S_TMP}")
    a(f"s_lshl_b32 s{S_TMP2}, s{S_DT0}, 7")
    a(f"s_add_u32 s{S_BQ}, s{S_BQ}, s{S_TMP2}")
    a(f"s_mul_i32 s{S_LB}, s{S_WAVE}, 9216")
    a(f"s_lshl_b32 s{S_NS}, s{S_NQUAD}, 1")
    a(f"s_add_u32 s{S_NS}, s{S_NS}, s{S_NDT}")
    a(f"s_lshl_b32 s{S_NS}, s{S_NS}, 1")
    def slot_offset(m_sgpr, lab_q, lab_done):
        a(f"s_lshl_b32 s{S_TMP}, s{S_NQUAD}, 2")
        a(f"s_cmp_ge_u32 s{m_sgpr}, s{S_TMP}")
        a(f"s_cbranch_scc1 {lab_q}")
        a(f"s_lshr_b32 s{S_TMP}, s{m_sgpr}, 2")
        a(f"s_lshl_b32 s{S_TMP}, s{S_TMP}, 7")
        a(f"s_and_b32 s{S_TMP2}, s{m_sgpr}, 3")
        a(f"s_mul_i32 s{S_TMP2}, s{S_TMP2}, {144*9216}")
        a(f"s_add_u32 s{S_SO}, s{S_B13}, s{S_TMP}")
        a(f"s_add_u32 s{S_SO}, s{S_SO}, s{S_TMP2}")
    def slot_offset_q(m_sgpr):
        a(f"s_sub_u32 s{S_TMP}, s{m_sgpr}, s{S_TMP}")
        a(f"s_and_b32 s{S_TMP2}, s{S_TMP}, 1")
        a(f"s_mul_i32 s{S_TMP2}, s{S_TMP2}, {288*3456}")
        a(f"s_lshr_b32 s{S_TMP}, s{S_TMP}, 1")
        a(f"s_lshl_b32 s{S_TMP}, s{S_TMP}, 7")
        a(f"s_add_u32 s{S_SO}, s{S_BQ}, s{S_TMP}")
        a(f"s_add_u32 s{S_SO}, s{S_SO}, s{S_TMP2}")
    def dma_batch(vo, srd, step):
        for j in range(9):
            if "noload" not in dbg:
                a(f"buffer_load_dwordx4 v{vo}, s[{srd}:{srd+3}], s{S_SO} offen lds")
            if j < 8:
                a(f"s_add_u32 m0, m0, 1024")
                a(f"s_add_u32 s{S_SO}, s{S_SO}, {step}")
    def issue(m_sgpr):
        lq, ld = a.uid(name + "_iq"), a.uid(name + "_id")
        a(f"s_and_b32 s{S_TMP}, s{m_sgpr}, 3")
        a(f"s_mul_i32 s{S_TMP}, s{S_TMP}, {SLOT}")
        a(f"s_add_u32 m0, s{S_TMP}, s{S_LB}")
        slot_offset(m_sgpr, lq, ld)
        dma_batch(V_L13, SRD_W, 8 * 9216)
        a(f"s_branch {ld}")
        a.label(lq)
        slot_offset_q(m_sgpr)
        dma_batch(V_LQ, SRD_WQ, 8 * 3456)
        a.label(ld)
    def prefetch(m_sgpr):
        lq, ld = a.uid(name + "_pq"), a.uid(name + "_pd")
        slot_offset(m_sgpr, lq, ld)
        a(f"buffer_load_dword v20, v{V_P13}, s[{SRD_W}:{SRD_W+3}], s{S_SO} offen")
        a(f"s_branch {ld}")
        a.label(lq)
        slot_offset_q(m_sgpr)
        a(f"s_cmp_ge_u32 s{m_sgpr}, s{S_NS}")
        a(f"s_cselect_b32 s{S_SO}, 0x7ffff000, s{S_SO}")
        a(f"buffer_load_dword v20, v{V_PQ}, s[{SRD_WQ}:{SRD_WQ+3}], s{S_SO} offen")
        a.label(ld)
    for m in range(PD):
        a(f"s_mov_b32 s{S_M}, {m}")
        prefetch(S_M)
    a("s_barrier")
    a(f"s_mov_b32 s{S_N}, 0")
    a.label(f"{name}_lpro")
    issue(S_N)
    a(f"s_add_u32 s{S_M}, s{S_N}, {PD}")
    prefetch(S_M)
    a(f"s_add_u32 s{S_N}, s{S_N}, 1")
    a(f"s_cmp_lt_u32 s{S_N}, 3")
    a(f"s_cbranch_scc1 {name}_lpro")
    a("s_waitcnt vmcnt(21)")
    a("s_barrier")
    a(f"s_mov_b32 s{S_N}, 1")
    a.label(f"{name}_lloop")
    a(f"s_add_u32 s{S_M}, s{S_N}, 1")
    a(f"s_cmp_ge_u32 s{S_M}, s{S_NS}")
    a(f"s_cbranch_scc1 {name}_llast")
    a("s_waitcnt vmcnt(11)")
    a("s_barrier")
    a(f"s_add_u32 s{S_M}, s{S_N}, 2")
    a(f"s_cmp_ge_u32 s{S_M}, s{S_NS}")
    a(f"s_cbranch_scc1 {name}_lnext")
    issue(S_M)
    a(f"s_add_u32 s{S_M}, s{S_M}, {PD}")
    prefetch(S_M)
    a.label(f"{name}_lnext")
    a(f"s_add_u32 s{S_N}, s{S_N}, 1")
    a(f"s_branch {name}_lloop")
    a.label(f"{name}_llast")
    a("s_waitcnt vmcnt(0)")
    a("s_barrier")
    if "now2" not in dbg:
        a("s_load_dwordx2 s[4:5], s[0:1], 48")
        a("s_load_dwordx2 s[6:7], s[0:1], 16")
        a(f"s_lshl_b32 s{S_TMP}, s2, 2")
        a(f"s_add_u32 s{S_TMP}, s{S_TMP}, s{S_WAVE}")
        a(f"s_mul_i32 s{S_TMP2}, s{S_TMP}, {41*128}")
        a(f"v_lshlrev_b32 v{V_T0}, 7, v{V_LANE}")
        a(f"v_cmp_gt_u32 vcc, 41, v{V_LANE}")
        a(f"v_mov_b32 v{V_T1}, 0x7fffffff")
        a("s_waitcnt lgkmcnt(0)")
        a(f"v_cndmask_b32 v21, v{V_T1}, v{V_T0}, vcc")
        make_srd(a, 28, 4, 5, 0, 4608 * 1152)
        a(f"buffer_load_dword v20, v21, s[28:31], s{S_TMP2} offen")
        a(f"s_mul_i32 s{S_TMP2}, s{S_TMP}, {6*128}")
        a(f"v_cmp_gt_u32 vcc, 6, v{V_LANE}")
        make_srd(a, 32, 6, 7, 0, 576 * 1152)
        a(f"v_cndmask_b32 v22, v{V_T1}, v{V_T0}, vcc")
        a(f"buffer_load_dword v20, v22, s[32:35], s{S_TMP2} offen")
    a.label(END)
    a("s_endpgm")
    return a.text() + kernel_descriptor(name, 256, 256)
```

```python
from lib import *
from k1 import f2h, perm_pi, emit_stamp_store

KB = 2 * 256 * 32
VROW = 512
VB = 19 * VROW
BUF = KB + VB
NBUF = 3
LDS_FLAG = NBUF * BUF
LDS_BYTES = LDS_FLAG + 64
OFF_SHIFT = 80.0
LAUNCH = ("k2_kernel", 256 + 16 * 3 * NSPLIT, 256, LDS_BYTES)

def publish(a, s_off, younger):
    a(f"s_waitcnt vmcnt({younger})")
    a("s_barrier")
    lab = a.uid("pub")
    a("s_cmp_eq_u32 s3, 0")
    a(f"s_cbranch_scc0 {lab}")
    a("v_mov_b32 v4, 1")
    a(f"v_and_b32 v5, 63, v0")
    a(f"v_cmp_eq_u32 vcc, 0, v5")
    a(f"v_mov_b32 v5, 0x7fffffff")
    a("s_nop 0")
    a(f"v_cndmask_b32 v5, v5, 0, vcc")
    a(f"buffer_store_dword v4, v5, s[36:39], s{s_off} offen sc0 sc1")
    a.label(lab)

def gen_k2(name="k2_kernel", stamp=False, dbg=""):
    import kd, k3
    fused = not any(k in dbg for k in ("nofuse", "noattn", "nodown"))
    a = Asm()
    kernel_header(a, name)
    END = name + "_end"
    if "fst" in dbg:
        a("s_memtime s[60:61]")
        a("s_memrealtime s[72:73]")
    a("s_cmp_ge_u32 s2, 256")
    a(f"s_cbranch_scc1 {name}_down")
    if "noattn" not in dbg:
        attention_body(a, name, stamp, dbg)
    if fused:
        a("s_lshl_b32 s59, s15, 7")
        a("s_lshl_b32 s41, s14, 2")
        a("s_add_u32 s59, s59, s41")
        a(f"s_branch {name}_final")
    else:
        a("s_endpgm")
    a.label(f"{name}_down")
    a(f"s_cmp_ge_u32 s2, {256 + 16 * 3 * NSPLIT}")
    a(f"s_cbranch_scc1 {END}")
    if "nodown" not in dbg:
        a("s_sub_u32 s58, s2, 256")
        kd.down_body(a, name + "_d", stamp, dbg, "s58")
    if fused:
        a("s_mul_i32 s59, s14, 3")
        a("s_add_u32 s59, s59, s15")
        a("s_lshl_b32 s59, s59, 5")
        a("s_lshl_b32 s42, s40, 2")
        a("s_add_u32 s59, s59, s42")
        a("s_add_u32 s59, s59, 1024")
        a("s_cmp_lt_u32 s2, 288")
        a(f"s_cbranch_scc1 {name}_dfin")
        make_srd(a, 36, 12, 13, WS_F, SZ_F)
        publish(a, 59, 0)
        a("s_endpgm")
        a.label(f"{name}_dfin")
        a("s_barrier")
        a.label(f"{name}_final")
        n = k3.final_pre(a, name + "_f", "fst" in dbg, dbg, "s2", fused=True)
        publish(a, 59, n)
        k3.final_post(a, name + "_f", "fst" in dbg, dbg, fused=True)
    a.label(END)
    a("s_endpgm")
    return a.text() + kernel_descriptor(name, 240, 240)

def attention_body(a, name, stamp, dbg, wg="s2"):
    S_WAVE, S_HEAD, S_QB = 3, 14, 15
    SRD_Q, SRD_K, SRD_V, SRD_O = 16, 20, 24, 28
    S_TMP, S_TMP2, S_CH, S_MODE = 40, 41, 42, 43
    S_M0K, S_M0V, S_LB, S_LBN, S_KSRC, S_VSRC = 44, 45, 46, 47, 48, 49
    S_Q0, S_W0, S_LBX, S_I, S_NT = 50, 51, 52, 53, 54
    S_KW = 9
    S_ST = 60
    V_LANE, V_N, V_HI, V_PI, V_T0, V_T1 = 1, 2, 3, 4, 5, 6
    V_KA = 7
    V_VA = 10
    V_DK, V_DV = 18, 19
    V_MX = 22
    V_KC, V_VC = 24, 26
    Q1, Q2 = 36, 44
    KF1, KF2 = 52, 60
    VF = 68
    SS = 84
    PP = 116
    OO = 132
    CM = 164
    AD = 196
    S_U0, S_OO = 55, 59
    def stamp_at(i):
        if stamp: a(f"s_memtime s[{S_ST+2*i}:{S_ST+2*i+1}]")
    def put(l):
        if l.endswith(":"): a.label(l[:-1])
        else: a(l)
    if "win" in dbg: a("s_setprio 2")
    a("s_load_dwordx2 s[12:13], s[0:1], 72")
    stamp_at(0)
    if stamp: a(f"s_memrealtime s[{S_ST+12}:{S_ST+13}]")
    a("v_lshrrev_b32 v1, 6, v0")
    a(f"s_and_b32 s14, {wg}, 7")
    a(f"v_readfirstlane_b32 s{S_WAVE}, v1")
    a("s_lshl_b32 s14, s14, 2")
    a(f"s_bfe_u32 s15, {wg}, 0x20003")
    a(f"s_add_u32 s{S_HEAD}, s14, s15")
    a(f"s_lshr_b32 s{S_QB}, {wg}, 5")
    a(f"v_and_b32 v{V_LANE}, 63, v0")
    a(f"v_and_b32 v{V_N}, 31, v{V_LANE}")
    a(f"v_lshrrev_b32 v{V_HI}, 5, v{V_LANE}")
    perm_pi(a, V_PI, V_N, V_T0)
    a("s_waitcnt lgkmcnt(0)")
    a(f"s_mul_i32 s{S_TMP}, s{S_HEAD}, 18")
    a(f"s_lshr_b32 s{S_U0}, s{S_TMP}, 4")
    a(f"s_and_b32 s{S_OO}, s{S_TMP}, 15")
    a(f"s_lshl_b32 s{S_TMP}, s{S_U0}, 16")
    for srd, off in ((SRD_Q, WS_QK), (SRD_K, WS_QK + 36 * GRP)):
        a(f"s_add_u32 s{srd}, s12, {hex(off)}")
        a(f"s_addc_u32 s{srd+1}, s13, 0")
        a(f"s_add_u32 s{srd}, s{srd}, s{S_TMP}")
        a(f"s_addc_u32 s{srd+1}, s{srd+1}, 0")
        a(f"s_mov_b32 s{srd+2}, {2*GRP}")
        a(f"s_mov_b32 s{srd+3}, 0x20000")
    a(f"s_mul_i32 s{S_TMP}, s{S_HEAD}, {18*4096}")
    a(f"s_add_u32 s{SRD_V}, s12, {hex(WS_VT)}")
    a(f"s_addc_u32 s{SRD_V+1}, s13, 0")
    a(f"s_add_u32 s{SRD_V}, s{SRD_V}, s{S_TMP}")
    a(f"s_addc_u32 s{SRD_V+1}, s{SRD_V+1}, 0")
    a(f"s_mov_b32 s{SRD_V+2}, {18*4096}")
    a(f"s_mov_b32 s{SRD_V+3}, 0x20000")
    make_srd(a, SRD_O, 12, 13, WS_O, SZ_O)
    a(f"v_bfe_u32 v{V_T0}, v{V_LANE}, 4, 1")
    a(f"v_xor_b32 v{V_T0}, v{V_T0}, v{V_LANE}")
    a(f"v_lshlrev_b32 v{V_DK}, 4, v{V_T0}")
    a(f"v_xor_b32 v{V_T0}, v{V_N}, v{V_HI}")
    for i in range(3):
        a(f"s_add_u32 s{S_TMP}, s{S_WAVE}, {4*i}")
        a(f"s_lshl_b32 s{S_TMP}, s{S_TMP}, 1")
        a(f"s_and_b32 s{S_TMP2}, s{S_TMP}, 15")
        a(f"v_xor_b32 v{V_T1}, s{S_TMP2}, v{V_T0}")
        a(f"v_lshlrev_b32 v{V_T1}, 4, v{V_T1}")
        a(f"v_lshl_add_u32 v{V_T1}, v{V_HI}, 12, v{V_T1}")
        a(f"s_lshl_b32 s{S_TMP}, s{S_TMP}, 12")
        a(f"v_add_u32 v{V_DV+i}, s{S_TMP}, v{V_T1}")
    a(f"s_lshl_b32 s{S_M0K}, s{S_WAVE}, 12")
    a(f"s_lshr_b32 s{S_TMP}, s{S_WAVE}, 1")
    a(f"s_lshl_b32 s{S_TMP}, s{S_TMP}, 16")
    a(f"s_and_b32 s{S_KW}, s{S_WAVE}, 1")
    a(f"s_lshl_b32 s{S_KW}, s{S_KW}, 12")
    a(f"s_add_u32 s{S_KW}, s{S_KW}, s{S_TMP}")
    a(f"s_lshl_b32 s{S_M0V}, s{S_WAVE}, 10")
    a(f"s_add_u32 s{S_M0V}, s{S_M0V}, {KB}")
    a(f"s_cmp_eq_u32 s{S_WAVE}, 0")
    a(f"s_cselect_b32 s{S_W0}, 1, 0")
    def dma_groups():
        G = []
        for i in range(4):
            G.append([f"s_add_u32 m0, s{S_LBN}, s{S_M0K}" if i == 0 else "s_add_u32 m0, m0, 1024",
                      f"s_add_u32 s{S_TMP}, s{S_KSRC}, s{S_KW}" if i == 0 else f"s_add_u32 s{S_TMP}, s{S_TMP}, 1024",
                      f"buffer_load_dwordx4 v{V_DK}, s[{SRD_K}:{SRD_K+3}], s{S_TMP} offen lds"])
        for i in range(2):
            G.append([f"s_add_u32 m0, s{S_LBN}, s{S_M0V}" if i == 0 else "s_add_u32 m0, m0, 4096", "s_nop 0",
                      f"buffer_load_dwordx4 v{V_DV+i}, s[{SRD_V}:{SRD_V+3}], s{S_VSRC} offen lds"])
        lab = a.uid(name + "_w0")
        G.append([f"s_cmp_eq_u32 s{S_W0}, 0", f"s_cbranch_scc1 {lab}", "s_add_u32 m0, m0, 4096", "s_nop 0",
                  f"buffer_load_dwordx4 v{V_DV+2}, s[{SRD_V}:{SRD_V+3}], s{S_VSRC} offen lds", f"{lab}:"])
        return G
    def request(chunk_sgpr_or_imm, lds_base):
        if isinstance(chunk_sgpr_or_imm, int):
            a(f"s_mov_b32 s{S_KSRC}, {chunk_sgpr_or_imm * 8192}")
            a(f"s_mov_b32 s{S_VSRC}, {chunk_sgpr_or_imm * 512}")
        else:
            a(f"s_lshl_b32 s{S_KSRC}, {chunk_sgpr_or_imm}, 13")
            a(f"s_lshl_b32 s{S_VSRC}, {chunk_sgpr_or_imm}, 9")
        a(f"s_mov_b32 s{S_LBN}, {lds_base}")
        for g in dma_groups():
            for l in g: put(l)
    a(f"s_lshl_b32 s{S_Q0}, s{S_QB}, 8")
    a(f"s_lshl_b32 s{S_TMP2}, s{S_WAVE}, 6")
    a(f"s_add_u32 s{S_Q0}, s{S_Q0}, s{S_TMP2}")
    a(f"v_add_u32 v{V_T0}, s{S_Q0}, v{V_PI}")
    a(f"v_lshlrev_b32 v{V_T0}, 5, v{V_T0}")
    a(f"v_lshl_add_u32 v{V_T1}, v{V_HI}, 4, v{V_T0}")
    a(f"s_mov_b32 s{S_TMP}, {GRP}")
    for j in range(2):
        a(f"buffer_load_dwordx4 v[{Q1+4*j}:{Q1+4*j+3}], v{V_T1}, s[{SRD_Q}:{SRD_Q+3}], 0 offen offset:{j*1024}")
        a(f"buffer_load_dwordx4 v[{Q2+4*j}:{Q2+4*j+3}], v{V_T1}, s[{SRD_Q}:{SRD_Q+3}], s{S_TMP} offen offset:{j*1024}")
    request(0, 0)
    request(1, BUF)
    a(f"v_bfe_u32 v{V_T0}, v{V_PI}, 3, 1")
    a(f"v_xor_b32 v{V_T0}, v{V_T0}, v{V_HI}")
    a(f"v_lshlrev_b32 v{V_T0}, 4, v{V_T0}")
    a(f"v_lshl_add_u32 v{V_KA}, v{V_PI}, 5, v{V_T0}")
    a(f"v_subrev_u32 v{V_T0}, 16, v{V_PI}")
    a(f"v_cmp_gt_u32 vcc, 19, v{V_N}")
    a("s_nop 1")
    a(f"v_cndmask_b32 v{V_T0}, v{V_T0}, v{V_PI}, vcc")
    a(f"v_and_b32 v{V_T1}, 15, v{V_T0}")
    a(f"v_xor_b32 v{V_T1}, v{V_T1}, v{V_HI}")
    a(f"v_lshlrev_b32 v{V_T0}, 9, v{V_T0}")
    a(f"v_add_u32 v{V_T0}, {KB}, v{V_T0}")
    for c in range(8):
        kt, m = c >> 1, c & 1
        a(f"v_xor_b32 v{V_VA+c}, {4*kt + 2*m}, v{V_T1}")
        a(f"v_lshl_add_u32 v{V_VA+c}, v{V_VA+c}, 4, v{V_T0}")
    a(f"v_mov_b32 v{SS}, 0x3f803f80")
    a(f"v_and_b32 v{V_T0}, 127, v0")
    a(f"v_lshlrev_b32 v{V_T0}, 2, v{V_T0}")
    a(f"v_add_u32 v{V_T0}, {KB + 18*VROW}, v{V_T0}")
    for b in range(NBUF):
        a(f"ds_write_b32 v{V_T0}, v{SS} offset:{b*BUF}")
    a(f"s_mul_i32 s{S_TMP}, s{S_HEAD}, 3")
    a(f"v_add_u32 v{V_T0}, s{S_TMP}, v{V_HI}")
    a(f"v_lshlrev_b32 v{V_T1}, 4, v{V_N}")
    a(f"v_lshl_add_u32 v{AD}, v{V_T0}, 9, v{V_T1}")
    a(f"s_add_u32 s{S_TMP}, s{S_TMP}, 2")
    a(f"s_lshl_b32 s{S_TMP}, s{S_TMP}, 9")
    a(f"v_add_u32 v{AD+1}, s{S_TMP}, v{V_T1}")
    a(f"v_cmp_eq_u32 vcc, 0, v{V_HI}")
    a(f"v_mov_b32 v{SS+8}, 0x7fffffff")
    a("s_nop 0")
    a(f"v_cndmask_b32 v{AD+1}, v{SS+8}, v{AD+1}, vcc")
    a(f"s_mov_b32 s{S_MODE}, 0")
    a("s_waitcnt vmcnt(6) lgkmcnt(0)")
    a("s_barrier")
    stamp_at(1)
    a(f"v_lshlrev_b32 v{V_T0}, 3, v{V_HI}")
    a(f"s_add_u32 s{S_TMP}, s{S_OO}, 2")
    for p in range(4):
        a(f"v_add_u32 v{V_T1}, {2*p}, v{V_T0}")
        a(f"v_cmp_le_u32 vcc, s{S_OO}, v{V_T1}")
        a("s_nop 1")
        for j in range(2): a(f"v_cndmask_b32 v{Q1+4*j+p}, 0, v{Q1+4*j+p}, vcc")
        a(f"v_cmp_gt_u32 vcc, s{S_TMP}, v{V_T1}")
        a("s_nop 1")
        for j in range(2): a(f"v_cndmask_b32 v{Q2+4*j+p}, 0, v{Q2+4*j+p}, vcc")

    def set_k_addr(lb):
        return [f"v_add_u32 v{V_KC}, s{lb}, v{V_KA}"]
    def set_k_addr_imm(off):
        return [f"v_add_u32 v{V_KC}, {off}, v{V_KA}"]
    def set_v_addr(lb):
        return [f"v_add_u32 v{V_VC+c}, s{lb}, v{V_VA+c}" for c in range(8)]
    def k_reads(kt, s):
        return [f"ds_read_b128 v[{KF1+4*s}:{KF1+4*s+3}], v{V_KC} offset:{kt*1024}",
                f"ds_read_b128 v[{KF2+4*s}:{KF2+4*s+3}], v{V_KC} offset:{kt*1024+8192}"]
    def v_reads(kt, s):
        o = (kt >> 2) * 256
        return [f"ds_read_b128 v[{VF+8*s+4*m}:{VF+8*s+4*m+3}], v{V_VC+2*(kt&3)+m} offset:{o}" for m in range(2)]
    def qk(s, j, sb, shift=True):
        d = SS + 16 * sb
        c = f"v[{CM+16*j}:{CM+16*j+15}]" if shift else "0"
        return [f"v_mfma_f32_32x32x16_bf16 v[{d}:{d+15}], v[{KF1+4*s}:{KF1+4*s+3}], v[{Q1+4*j}:{Q1+4*j+3}], {c}",
                f"v_mfma_f32_32x32x16_bf16 v[{d}:{d+15}], v[{KF2+4*s}:{KF2+4*s+3}], v[{Q2+4*j}:{Q2+4*j+3}], v[{d}:{d+15}]"]
    def pv(s, j, pb):
        o = OO + 16 * j; p = PP + 8 * pb
        return [f"v_mfma_f32_32x32x16_bf16 v[{o}:{o+15}], v[{VF+8*s+4*m}:{VF+8*s+4*m+3}], v[{p+4*m}:{p+4*m+3}], v[{o}:{o+15}]" for m in range(2)]

    for l in set_k_addr_imm(0): a(l)
    for kt in range(2):
        for l in k_reads(kt, kt): a(l)
    bufs = [SS, SS + 16, OO, OO + 16]
    a("s_waitcnt lgkmcnt(2)")
    for kt in range(2):
        if kt == 1: a("s_waitcnt lgkmcnt(0)")
        for j in range(2):
            d = bufs[2 * kt + j]
            a(f"v_mfma_f32_32x32x16_bf16 v[{d}:{d+15}], v[{KF1+4*kt}:{KF1+4*kt+3}], v[{Q1+4*j}:{Q1+4*j+3}], 0")
            a(f"v_mfma_f32_32x32x16_bf16 v[{d}:{d+15}], v[{KF2+4*kt}:{KF2+4*kt+3}], v[{Q2+4*j}:{Q2+4*j+3}], v[{d}:{d+15}]")
    a("s_nop 5")
    for kt in range(2):
        for j in range(2):
            d = bufs[2 * kt + j]
            if kt == 1 and j == 0: a("s_nop 7")
            for r in range(0, 16, 2):
                prev = f"v{V_MX+j}" if (kt or r) else f"v{d}"
                a(f"v_max3_f32 v{V_MX+j}, v{d+r}, v{d+r+1}, {prev}")
    a(f"s_branch {name}_maxdone")
    a.label(f"{name}_maxpass")
    for j in range(2):
        a(f"v_mov_b32 v{V_MX+j}, 0xff800000")
    a(f"s_mov_b32 s{S_CH}, 0")
    a(f"s_mov_b32 s{S_LB}, 0")
    a(f"s_mov_b32 s{S_NT}, 8")
    a.label(f"{name}_maxchunk")
    for l in set_k_addr(S_LB): a(l)
    a(f"s_mov_b32 s{S_I}, 0")
    a.label(f"{name}_maxtile")
    a(f"ds_read_b128 v[{KF1}:{KF1+3}], v{V_KC}")
    a(f"ds_read_b128 v[{KF2}:{KF2+3}], v{V_KC} offset:8192")
    a(f"v_add_u32 v{V_KC}, 1024, v{V_KC}")
    a("s_waitcnt lgkmcnt(0)")
    for j in range(2):
        for l in qk(0, j, j, shift=False): a(l)
    a("s_nop 7"); a("s_nop 7")
    for j in range(2):
        d = SS + 16 * j
        for r in range(0, 16, 2):
            a(f"v_max3_f32 v{V_MX+j}, v{d+r}, v{d+r+1}, v{V_MX+j}")
    a(f"s_add_u32 s{S_I}, s{S_I}, 1")
    a(f"s_cmp_lt_u32 s{S_I}, s{S_NT}")
    a(f"s_cbranch_scc1 {name}_maxtile")
    a(f"s_add_u32 s{S_CH}, s{S_CH}, 1")
    a("s_barrier")
    a(f"s_cmp_ge_u32 s{S_CH}, 8")
    a(f"s_cbranch_scc1 {name}_maxall")
    request(f"s{S_CH}", 0)
    a("s_waitcnt vmcnt(0)")
    a("s_barrier")
    a(f"s_branch {name}_maxchunk")
    a.label(f"{name}_maxall")
    request(0, 0)
    request(1, BUF)
    a("s_waitcnt vmcnt(0)")
    a("s_barrier")
    a.label(f"{name}_maxdone")
    a(f"s_cmp_eq_u32 s{S_MODE}, 0")
    a(f"s_cselect_b32 s{S_TMP}, {f2h(OFF_SHIFT)}, 0")
    for j in range(2):
        m, t0 = V_MX + j, SS
        a(f"v_mov_b32 v{t0}, v{m}")
        a("s_nop 1")
        a(f"v_permlane32_swap_b32 v{m}, v{t0}")
        a("s_nop 1")
        a(f"v_max_f32 v{m}, v{m}, v{t0}")
        a(f"v_add_f32 v{m}, s{S_TMP}, v{m}")
        a(f"v_sub_f32 v{m}, 0, v{m}")
        for r in range(16): a(f"v_mov_b32 v{CM+16*j+r}, v{m}")
    for r in range(32): a(f"v_mov_b32 v{OO+r}, 0")
    for r in range(8):
        a(f"v_mov_b32 v{PP+8+r}, 0")
        a(f"v_mov_b32 v{VF+8+r}, 0")
    stamp_at(2)

    a(f"s_mov_b32 s{S_CH}, 0")
    a(f"s_mov_b32 s{S_LB}, 0")
    a(f"s_mov_b32 s{S_LBX}, {BUF}")
    a(f"s_mov_b32 s{S_LBN}, {2*BUF}")
    a(f"s_mov_b32 s{S_KSRC}, {2*8192}")
    a(f"s_mov_b32 s{S_VSRC}, {2*512}")
    for l in set_k_addr(S_LB) + set_v_addr(S_LB): a(l)
    for l in k_reads(0, 0): a(l)
    a("s_waitcnt lgkmcnt(0)")
    for l in qk(0, 0, 0): a(l)
    a("s_nop 7")
    a("s_nop 3")
    def unit(mf, sb, extra):
        d = SS + 16 * sb; p = PP + 8 * sb
        ex = [f"v_exp_f32 v{d+i}, v{d+i}" for i in range(16)]
        cv = [f"v_cvt_pk_bf16_f32 v{p+i}, v{d+2*i}, v{d+2*i+1}" for i in range(8)]
        seq = [ex[0:4], ex[4:8] + cv[0:2], ex[8:12] + cv[2:4], ex[12:16] + cv[4:8]]
        if "grp" in dbg:
            seq = [ex[0:3], ex[3:6], ex[6:9], ex[9:16] + cv]
            if "win" in dbg:
                seq = [ex[0:3], ex[3:6], ex[6:9], ex[9:12] + ["s_setprio 0"] + ex[12:16] + cv[0:5] + ["s_setprio 2"] + cv[5:8]]
                if "winb" in dbg: seq[3] = ex[9:11] + ["s_setprio 0"] + ex[11:16] + cv[0:7] + ["s_setprio 2"] + cv[7:8]
                if "winc" in dbg: seq[3] = ex[9:13] + ["s_setprio 0"] + ex[13:16] + cv[0:3] + ["s_setprio 2"] + cv[3:8]
        def keep(l):
            if "a_nodma" in dbg and ("buffer_load" in l or "m0" in l): return False
            if "a_nords" in dbg and (l.startswith("ds_read") or l.startswith("s_waitcnt lgkm")): return False
            if "a_nobar" in dbg and (l == "s_barrier" or l.startswith("s_waitcnt vmcnt")): return False
            return True
        for i in range(4):
            for l in extra.get(("pre", i), []):
                if keep(l): put(l)
            a(mf[i])
            for l in extra.get(i, []):
                if keep(l): put(l)
            for l in seq[i]: a(l)
    if "win" in dbg: a("s_setprio 2")
    a.label(f"{name}_chunk")
    dg = dma_groups()
    skip = a.uid(name + "_nodma")
    for kt in range(8):
        s = kt & 1
        exA = {}
        if kt == 1:
            exA[("pre", 0)] = ["s_waitcnt vmcnt(0)", "s_barrier"]
        if kt < 7:
            exA[0] = k_reads(kt + 1, s ^ 1) + v_reads(kt, s)
        else:
            exA[0] = set_k_addr(S_LBX) + k_reads(0, s ^ 1) + v_reads(kt, s)
        if 2 <= kt <= 5:
            lab = a.uid(name + "_nd")
            pieces = dg[2*(kt-2)] + (dg[2*(kt-2)+1] if 2*(kt-2)+1 < len(dg) else [])
            exA[3] = [f"s_cmp_ge_u32 s{S_CH}, 6", f"s_cbranch_scc1 {lab}"] + pieces + [f"{lab}:"]
        q1 = qk(s, 1, 1); p1 = pv(s ^ 1, 1, 1)
        unit([q1[0], q1[1], p1[0], p1[1]], 0, exA)
        exB = {("pre", 0): ["s_waitcnt lgkmcnt(0)"]}
        if kt == 7:
            exB[0] = set_v_addr(S_LBX)
            exB[2] = [f"s_add_u32 s{S_CH}, s{S_CH}, 1", f"s_mov_b32 s{S_TMP2}, s{S_LB}", f"s_mov_b32 s{S_LB}, s{S_LBX}",
                      f"s_mov_b32 s{S_LBX}, s{S_LBN}", f"s_mov_b32 s{S_LBN}, s{S_TMP2}",
                      f"s_add_u32 s{S_KSRC}, s{S_KSRC}, 8192", f"s_add_u32 s{S_VSRC}, s{S_VSRC}, 512"]
        q0 = qk(s ^ 1, 0, 0); p0 = pv(s, 0, 0)
        unit([q0[0], q0[1], p0[0], p0[1]], 1, exB)
    a(f"s_cmp_lt_u32 s{S_CH}, 8")
    a(f"s_cbranch_scc1 {name}_chunk")
    for l in pv(1, 1, 1): a(l)
    if "win" in dbg: a("s_setprio 0")
    stamp_at(3)
    a("s_nop 7"); a("s_nop 7")
    RINV = SS
    ZZ = SS + 8
    a(f"v_mov_b32 v{ZZ}, 0")
    a(f"v_mov_b32 v{ZZ+1}, {f2h(2.0**100)}")
    a(f"v_mov_b32 v{ZZ+2}, 0x7fc00000")
    for j in range(2):
        o = OO + 16 * j
        l0, l1 = RINV + 2 * j, RINV + 2 * j + 1
        a(f"v_mov_b32 v{l0}, v{o+10}")
        a(f"v_mov_b32 v{l1}, v{o+10}")
        a("s_nop 1")
        a(f"v_permlane32_swap_b32 v{l0}, v{l1}")
        a("s_nop 1")
        a(f"v_cmp_nlt_f32 vcc, v{l0}, v{ZZ+1}")
        a(f"v_rcp_f32 v{l0}, v{l0}")
        a("s_nop 0")
        a(f"v_cndmask_b32 v{ZZ}, v{ZZ}, v{ZZ+2}, vcc")
        for r in range(10):
            a(f"v_mul_f32 v{o+r}, v{o+r}, v{l0}")
        for r in range(8):
            a(f"v_fma_f32 v{ZZ}, v{o+r}, 0, v{ZZ}")
    a(f"v_cmp_u_f32 vcc, v{ZZ}, v{ZZ}")
    a("s_nop 3")
    BAD = "vcc"
    a(f"s_cmp_lg_u64 vcc, 0")
    a(f"s_cselect_b32 s{S_TMP}, 1, 0")
    a(f"s_cmp_eq_u32 s{S_MODE}, 1")
    a(f"s_cselect_b32 s{S_TMP}, 0, s{S_TMP}")
    if "force1" in dbg:
        a(f"s_xor_b32 s{S_TMP}, s{S_MODE}, 1")
    a(f"v_mov_b32 v{V_T0}, s{S_TMP}")
    a(f"s_lshl_b32 s{S_TMP2}, s{S_WAVE}, 2")
    a(f"s_add_u32 s{S_TMP2}, s{S_TMP2}, {LDS_FLAG}")
    a(f"v_mov_b32 v{V_T1}, s{S_TMP2}")
    a(f"ds_write_b32 v{V_T1}, v{V_T0}")
    a("s_waitcnt lgkmcnt(0)")
    a("s_barrier")
    a(f"v_mov_b32 v{V_T1}, {LDS_FLAG}")
    a(f"ds_read_b128 v[{SS+12}:{SS+15}], v{V_T1}")
    a("s_waitcnt lgkmcnt(0)")
    a(f"v_or_b32 v{SS+12}, v{SS+12}, v{SS+13}")
    a(f"v_or3_b32 v{SS+12}, v{SS+12}, v{SS+14}, v{SS+15}")
    a("s_nop 0")
    a(f"v_readfirstlane_b32 s{S_TMP}, v{SS+12}")
    a("s_nop 3")
    a(f"s_cmp_eq_u32 s{S_TMP}, 0")
    a(f"s_cbranch_scc1 {name}_store")
    a(f"s_mov_b32 s{S_MODE}, 1")
    a("s_barrier")
    request(0, 0)
    a("s_waitcnt vmcnt(0)")
    a("s_barrier")
    a(f"s_branch {name}_maxpass")
    a.label(f"{name}_store")
    for j in range(2):
        o = OO + 16 * j
        a(f"s_lshr_b32 s{S_TMP}, s{S_Q0}, 5")
        a(f"s_add_u32 s{S_TMP}, s{S_TMP}, {j}")
        a(f"s_mul_i32 s{S_TMP}, s{S_TMP}, 49152")
        for w in range(5):
            a(f"v_cvt_pk_bf16_f32 v{o+w}, v{o+2*w}, v{o+2*w+1}")
        for w in range(5, 8): a(f"v_mov_b32 v{o+w}, 0")
        a(f"buffer_store_dwordx4 v[{o}:{o+3}], v{AD}, s[{SRD_O}:{SRD_O+3}], s{S_TMP} offen sc0 sc1")
        a(f"buffer_store_dwordx4 v[{o+4}:{o+7}], v{AD+1}, s[{SRD_O}:{SRD_O+3}], s{S_TMP} offen sc0 sc1")
    stamp_at(4)
    stamp_at(5)
    if stamp:
        a(f"s_memrealtime s[{S_ST+12+2}:{S_ST+12+3}]")
        emit_stamp_store(a, S_ST, 8)
```

```python
from lib import *
from k1 import f2h, LOG2E, perm_pi, dma_lane_offset128, emit_stamp_store

WO_BYTES = 576 * 128
LDS_BYTES = WO_BYTES + 1024
LAUNCH = ("k3_kernel", 288, 256, LDS_BYTES)

S_WAVE, S_TB, S_CT = 3, 14, 15
SRD_W, SRD_O, SRD_G, SRD_X, SRD_OUT, SRD_F = 16, 20, 24, 28, 32, 36
S_TMP, S_TMP2, S_OFF, S_CG, S_WK, S_TASK = 40, 41, 42, 43, 44, 45
S_ST = 60
V_LANE, V_N, V_HI, V_T0, V_T1, V_T2, V_DL, V_L16, V_XA, V_FA = 1, 2, 3, 4, 5, 6, 8, 9, 10, 11
OB = 16
ACC = 112
WR = 144
GB = 168
XB = 208
Y = 216
V_LB = 232
E, P = WR, OB + 16
NVGPR = 240

def gen_k3(name="k3_kernel", stamp=False, dbg=""):
    a = Asm()
    kernel_header(a, name)
    END = name + "_end"
    a("s_cmp_ge_u32 s2, 288")
    a(f"s_cbranch_scc1 {END}")
    final_pre(a, name, stamp, dbg, "s2", fused=False)
    final_post(a, name, stamp, dbg, fused=False)
    a.label(END)
    a("s_endpgm")
    return a.text() + kernel_descriptor(name, NVGPR, NVGPR)

def final_pre(a, name, stamp, dbg, task, fused):
    if fused and stamp: a("s_memtime s[62:63]")
    a(f"s_mov_b32 s{S_TASK}, {task}")
    a("s_load_dwordx2 s[4:5], s[0:1], 0")
    a("s_load_dwordx2 s[6:7], s[0:1], 16")
    a("s_load_dwordx2 s[8:9], s[0:1], 56")
    a("s_load_dwordx2 s[10:11], s[0:1], 72")
    if not fused:
        if stamp:
            a(f"s_memtime s[{S_ST}:{S_ST+1}]")
            a(f"s_memrealtime s[{S_ST+12}:{S_ST+13}]")
        a("v_lshrrev_b32 v1, 6, v0")
        a("s_nop 0")
        a(f"v_readfirstlane_b32 s{S_WAVE}, v1")
    a(f"s_and_b32 s{S_TMP}, s{S_TASK}, 7")
    a(f"s_lshr_b32 s{S_TMP2}, s{S_TASK}, 3")
    a(f"s_and_b32 s{S_TB}, s{S_TMP2}, 3")
    a(f"s_lshl_b32 s{S_TMP}, s{S_TMP}, 2")
    a(f"s_add_u32 s{S_TB}, s{S_TB}, s{S_TMP}")
    a(f"s_lshr_b32 s{S_CG}, s{S_TMP2}, 2")
    a(f"s_lshl_b32 s{S_TB}, s{S_TB}, 1")
    a(f"s_lshr_b32 s{S_TMP}, s{S_WAVE}, 1")
    a(f"s_add_u32 s{S_TB}, s{S_TB}, s{S_TMP}")
    a(f"s_and_b32 s{S_WK}, s{S_WAVE}, 1")
    a(f"s_lshl_b32 s{S_CT}, s{S_CG}, 1")
    a(f"s_add_u32 s{S_CT}, s{S_CT}, s{S_WK}")
    a(f"v_and_b32 v{V_LANE}, 63, v0")
    a("s_waitcnt lgkmcnt(0)")
    make_srd(a, SRD_W, 6, 7, 0, 576 * 1152)
    make_srd(a, SRD_O, 10, 11, WS_O, SZ_O)
    make_srd(a, SRD_G, 10, 11, WS_G, NSPLIT * SZ_G1)
    make_srd(a, SRD_X, 4, 5, 0, 2048 * 1152)
    make_srd(a, SRD_OUT, 8, 9, 0, 2048 * 1152)
    make_srd(a, SRD_F, 10, 11, WS_F, SZ_F)
    a(f"v_lshlrev_b32 v{V_L16}, 4, v{V_LANE}")
    a(f"s_movk_i32 s{S_TMP}, 1152")
    dma_lane_offset128(a, V_DL, V_LANE, S_TMP, V_T0, V_T1)
    a(f"s_mul_i32 s{S_OFF}, s{S_WAVE}, {18*8*1152}")
    a(f"s_lshl_b32 s{S_TMP}, s{S_CG}, 7")
    a(f"s_add_u32 s{S_OFF}, s{S_OFF}, s{S_TMP}")
    a(f"s_mul_i32 s{S_TMP}, s{S_WAVE}, {18*1024}")
    a(f"s_mov_b32 m0, s{S_TMP}")
    for j in range(18):
        a("s_nop 0")
        a(f"buffer_load_dwordx4 v{V_DL}, s[{SRD_W}:{SRD_W+3}], s{S_OFF} offen lds")
        if j < 17:
            a(f"s_add_u32 s{S_OFF}, s{S_OFF}, {8*1152}")
            a("s_add_u32 m0, m0, 1024")
    for r in range(4): a(f"v_mov_b32 v{Y+r}, 0")
    a(f"v_add_u32 v{V_T0}, {WO_BYTES}, v{V_L16}")
    a(f"ds_write_b128 v{V_T0}, v[{Y}:{Y+3}]")
    a(f"v_and_b32 v{V_N}, 31, v{V_LANE}")
    a(f"v_lshrrev_b32 v{V_HI}, 5, v{V_LANE}")
    perm_pi(a, V_T0, V_N, V_T1)
    a(f"s_lshl_b32 s{S_TMP}, s{S_TB}, 5")
    a(f"v_add_u32 v{V_T0}, s{S_TMP}, v{V_T0}")
    a(f"s_movk_i32 s{S_TMP}, 1152")
    a(f"v_mul_lo_u32 v{V_XA}, v{V_T0}, s{S_TMP}")
    a(f"v_lshl_add_u32 v{V_XA}, v{V_HI}, 4, v{V_XA}")
    a(f"s_lshl_b32 s{S_TMP}, s{S_CT}, 6")
    a(f"v_add_u32 v{V_XA}, s{S_TMP}, v{V_XA}")
    a(f"buffer_load_dwordx4 v[{XB}:{XB+3}], v{V_XA}, s[{SRD_X}:{SRD_X+3}], 0 offen")
    a(f"buffer_load_dwordx4 v[{XB+4}:{XB+7}], v{V_XA}, s[{SRD_X}:{SRD_X+3}], 0 offen offset:32")
    a(f"v_bfe_u32 v{V_T2}, v{V_LANE}, 4, 1")
    a(f"v_lshlrev_b32 v{V_T2}, 5, v{V_T2}")
    a(f"v_and_b32 v{V_T0}, 1, v{V_LANE}")
    a(f"v_lshl_add_u32 v{V_T2}, v{V_T0}, 4, v{V_T2}")
    a(f"v_bfe_u32 v{V_T0}, v{V_LANE}, 1, 1")
    a(f"v_lshl_add_u32 v{V_T2}, v{V_T0}, 3, v{V_T2}")
    a(f"s_mul_i32 s{S_TMP}, s{S_WK}, {8*36*128}")
    a(f"v_add_u32 v{V_T2}, s{S_TMP}, v{V_T2}")
    for j, (r0, r1) in enumerate(((0, 8), (16, 18), (26, 34))):
        a(f"v_mul_u32_u24 v{V_T0}, {r1 - r0}, v{V_HI}")
        a(f"v_bfe_u32 v{V_T1}, v{V_LANE}, 2, 2")
        a(f"v_add3_u32 v{V_T0}, v{V_T0}, v{V_T1}, {r0}")
        a(f"v_bfe_u32 v{V_T1}, v{V_T0}, 1, 1")
        a(f"v_lshl_add_u32 v{V_T1}, v{V_T1}, 6, v{V_T2}")
        a(f"v_lshl_add_u32 v{V_LB+2*j}, v{V_T0}, 7, v{V_T1}")
        a(f"v_xor_b32 v{V_LB+2*j+1}, 64, v{V_LB+2*j}")
    return 20

def final_post(a, name, stamp, dbg, fused, D=6):
    LDF = " sc1" if fused else ""
    def stamp_at(i):
        if stamp: a(f"s_memtime s[{S_ST+2*i}:{S_ST+2*i+1}]")
    def wait_flags(nlanes, s_base):
        lp, ld = a.uid(name + "_poll"), a.uid(name + "_polled")
        a(f"s_cmp_eq_u32 s{S_WAVE}, 0")
        a(f"s_cbranch_scc0 {ld}")
        a(f"v_lshlrev_b32 v{V_FA}, 2, v{V_LANE}")
        a(f"v_cmp_gt_u32 vcc, {nlanes}, v{V_LANE}")
        a(f"v_mov_b32 v{V_T1}, 0x7fffffff")
        a("s_nop 3")
        a(f"s_mov_b64 s[46:47], vcc")
        a(f"v_cndmask_b32 v{V_FA}, v{V_T1}, v{V_FA}, vcc")
        a.label(lp)
        a(f"buffer_load_dword v{V_T0}, v{V_FA}, s[{SRD_F}:{SRD_F+3}], s{s_base} offen sc1")
        a("s_waitcnt vmcnt(0)")
        a(f"v_cmp_ne_u32 vcc, 0, v{V_T0}")
        a("s_nop 3")
        a("s_and_b64 vcc, vcc, s[46:47]")
        a("s_cmp_eq_u64 vcc, s[46:47]")
        a(f"s_cbranch_scc1 {ld}")
        a("s_sleep 1")
        a(f"s_branch {lp}")
        a.label(ld)
        a("s_barrier")
    if fused:
        a(f"s_lshr_b32 s{S_TMP}, s{S_TB}, 2")
        a(f"s_mul_i32 s{S_TMP}, s{S_TMP}, 3")
        a(f"s_mul_i32 s{S_TMP2}, s{S_CG}, 43")
        a(f"s_lshr_b32 s{S_TMP2}, s{S_TMP2}, 7")
        a(f"s_add_u32 s{S_TMP}, s{S_TMP}, s{S_TMP2}")
        a(f"s_lshl_b32 s{S_TMP}, s{S_TMP}, 5")
        a(f"s_add_u32 s48, s{S_TMP}, 1024")
        wait_flags(NSPLIT, 48)
    if fused: stamp_at(2)
    a(f"s_mul_i32 s{S_TMP}, s{S_TB}, 18")
    a(f"s_add_u32 s{S_TMP}, s{S_TMP}, s{S_CT}")
    a(f"s_lshl_b32 s{S_OFF}, s{S_TMP}, 11")
    for s in range(NSPLIT):
        for q in range(2):
            a(f"buffer_load_dwordx4 v[{GB+8*s+4*q}:{GB+8*s+4*q+3}], v{V_L16}, s[{SRD_G}:{SRD_G+3}], s{S_OFF} offen offset:{q*1024}{LDF}")
        if s < NSPLIT - 1: a(f"s_add_u32 s{S_OFF}, s{S_OFF}, {SZ_G1}")
    if fused:
        a(f"s_lshr_b32 s{S_TMP}, s{S_TB}, 3")
        a(f"s_lshl_b32 s48, s{S_TMP}, 7")
        wait_flags(32, 48)
        stamp_at(3)
    else:
        stamp_at(1)
    a(f"s_mul_i32 s{S_TMP2}, s{S_TB}, 49152")
    a(f"s_mul_i32 s{S_TMP}, s{S_WK}, 24576")
    a(f"s_add_u32 s{S_TMP2}, s{S_TMP2}, s{S_TMP}")
    for ks in range(24):
        if ks % 4 == 0 and ks > 0: a(f"s_add_u32 s{S_TMP2}, s{S_TMP2}, 4096")
        a(f"buffer_load_dwordx4 v[{OB+4*ks}:{OB+4*ks+3}], v{V_L16}, s[{SRD_O}:{SRD_O+3}], s{S_TMP2} offen offset:{(ks%4)*1024}{LDF}")
    a(f"s_waitcnt vmcnt(24) lgkmcnt(0)")
    a("s_barrier")
    for s in range(NSPLIT):
        for q in range(8):
            g = GB + 8 * s + q
            dst = Y if s == 0 else E
            a(f"v_lshlrev_b32 v{dst+2*q}, 16, v{g}")
            a(f"v_and_b32 v{dst+2*q+1}, 0xffff0000, v{g}")
        if s > 0:
            for r in range(16): a(f"v_add_f32 v{Y+r}, v{Y+r}, v{E+r}")
    C2 = 1.0 / (LOG2E * LOG2E)
    a(f"s_mov_b32 s{S_TMP}, {f2h(C2)}")
    a(f"s_mov_b32 s{S_TMP2}, {f2h(-LOG2E)}")
    SG = GB
    for r in range(16):
        a(f"v_mul_f32 v{Y+r}, s{S_TMP}, v{Y+r}")
        a(f"v_mul_f32 v{SG+r}, s{S_TMP2}, v{Y+r}")
    for r in range(16): a(f"v_exp_f32 v{SG+r}, v{SG+r}")
    for r in range(16): a(f"v_add_f32 v{SG+r}, 1.0, v{SG+r}")
    for r in range(16): a(f"v_rcp_f32 v{SG+r}, v{SG+r}")
    XF = GB + 16
    for r in range(16):
        d = r // 2
        if r % 2 == 0: a(f"v_lshlrev_b32 v{XF+r}, 16, v{XB+d}")
        else: a(f"v_and_b32 v{XF+r}, 0xffff0000, v{XB+d}")
    for r in range(16): a(f"v_mul_f32 v{Y+r}, v{Y+r}, v{SG+r}")
    def reads(i):
        r = WR + 4 * (i % D)
        k, t = i >> 1, i & 1
        m, j = divmod(k, 3)
        return [f"ds_read_b64_tr_b16 v[{r}:{r+1}], v{V_LB+2*j+t} offset:{m*4608}",
                f"ds_read_b64_tr_b16 v[{r+2}:{r+3}], v{V_LB+2*j+t} offset:{m*4608+512}"]
    for i in range(D):
        for l in reads(i): a(l)
    for i in range(48):
        k, t = i >> 1, i & 1
        if t == 0 and k % 2 == 0: a(f"s_waitcnt vmcnt({23 - (k + 1)})")
        if i % 2 == 0: a(f"s_waitcnt lgkmcnt({2 * (min(i + D - 1, 47) - (i + 1))})")
        r = WR + 4 * (i % D); acc = ACC + 16 * t
        c = "0" if k == 0 else f"v[{acc}:{acc+15}]"
        a(f"v_mfma_f32_32x32x16_bf16 v[{acc}:{acc+15}], v[{r}:{r+3}], v[{OB+4*k}:{OB+4*k+3}], {c}")
        if i + D < 48:
            for l in reads(i + D): a(l)
    if fused: stamp_at(4)
    else: stamp_at(2)
    a("s_barrier")
    a(f"s_lshl_b32 s{S_TMP}, s{S_WAVE}, 12")
    a(f"v_add_u32 v{V_T0}, s{S_TMP}, v{V_L16}")
    lk, lj = a.uid(name + "_k"), a.uid(name + "_j")
    a("s_nop 7")
    a(f"s_cmp_eq_u32 s{S_WK}, 0")
    a(f"s_cbranch_scc1 {lk}")
    for q in range(4): a(f"ds_write_b128 v{V_T0}, v[{ACC+4*q}:{ACC+4*q+3}] offset:{q*1024}")
    a("s_waitcnt lgkmcnt(0)")
    for r in range(16): a(f"v_mov_b32 v{ACC+r}, v{ACC+16+r}")
    a(f"s_branch {lj}")
    a.label(lk)
    for q in range(4): a(f"ds_write_b128 v{V_T0}, v[{ACC+16+4*q}:{ACC+16+4*q+3}] offset:{q*1024}")
    a.label(lj)
    a("s_waitcnt lgkmcnt(0)")
    a("s_barrier")
    a(f"s_xor_b32 s{S_TMP}, s{S_WAVE}, 1")
    a(f"s_lshl_b32 s{S_TMP}, s{S_TMP}, 12")
    a(f"v_add_u32 v{V_T0}, s{S_TMP}, v{V_L16}")
    for q in range(4): a(f"ds_read_b128 v[{P+4*q}:{P+4*q+3}], v{V_T0} offset:{q*1024}")
    a("s_waitcnt lgkmcnt(0)")
    for r in range(16): a(f"v_add_f32 v{ACC+r}, v{ACC+r}, v{P+r}")
    if not fused: stamp_at(3)
    for r in range(16): a(f"v_fma_f32 v{Y+r}, v{Y+r}, v{ACC+r}, v{XF+r}")
    for r in range(8): a(f"v_cvt_pk_bf16_f32 v{Y+r}, v{Y+2*r}, v{Y+2*r+1}")
    a(f"buffer_store_dwordx4 v[{Y}:{Y+3}], v{V_XA}, s[{SRD_OUT}:{SRD_OUT+3}], 0 offen")
    a(f"buffer_store_dwordx4 v[{Y+4}:{Y+7}], v{V_XA}, s[{SRD_OUT}:{SRD_OUT+3}], 0 offen offset:32")
    if stamp:
        if fused:
            stamp_at(5)
            a("s_mov_b32 s12, s10")
            a("s_mov_b32 s13, s11")
        else:
            stamp_at(4); stamp_at(5)
        a(f"s_memrealtime s[{S_ST+14}:{S_ST+15}]")
        emit_stamp_store(a, S_ST, 8)
```

```python
from lib import *
from k1 import f2h, tr_lane_base128, dma_lane_offset128, emit_stamp_store

DSLOT = 12288
NRING = 6
AHEAD = 3
SLICE = 58
LDS_BYTES = NRING * DSLOT
NWG = 16 * 3 * NSPLIT

def down_body(a, name, stamp, dbg, wg, D=6):
    S_WAVE, S_RB, S_CG, S_KS = 3, 14, 15, 40
    SRD_W, SRD_H, SRD_G = 16, 20, 24
    S_TMP, S_TMP2, S_N, S_WOFF, S_HOFF = 41, 42, 43, 44, 45
    S_DO = 48
    S_M0W, S_GOFF, S_PW, S_PH, S_NSL = 51, 52, 53, 54, 55
    S_ST = 60
    V_LANE, V_T0, V_T1, V_LB, V_B, V_DL, V_HL, V_PW, V_PH = 1, 2, 3, 4, 6, 10, 11, 12, 13
    ACC = 16
    HB = 112
    WR = 160
    GST = "" if "gplain" in dbg else " sc0 sc1"
    def stamp_at(i):
        if stamp: a(f"s_memtime s[{S_ST+2*i}:{S_ST+2*i+1}]")
    if "dprio" in dbg: a("s_setprio 1")
    a("s_load_dwordx2 s[4:5], s[0:1], 48")
    a("s_load_dwordx2 s[12:13], s[0:1], 72")
    stamp_at(0)
    if stamp: a(f"s_memrealtime s[{S_ST+12}:{S_ST+13}]")
    a("v_lshrrev_b32 v1, 6, v0")
    a(f"s_and_b32 s{S_TMP}, {wg}, 7")
    a(f"v_readfirstlane_b32 s{S_WAVE}, v1")
    a(f"s_lshr_b32 s{S_TMP2}, {wg}, 3")
    a(f"s_mul_i32 s{S_TMP}, s{S_TMP}, {NSPLIT*6}")
    a(f"s_add_u32 s{S_TMP}, s{S_TMP}, s{S_TMP2}")
    a(f"s_mul_i32 s{S_TMP2}, s{S_TMP}, 2731")
    a(f"s_lshr_b32 s{S_TMP2}, s{S_TMP2}, 16")
    a(f"s_mul_i32 s{S_RB}, s{S_TMP2}, 24")
    a(f"s_sub_u32 s{S_TMP}, s{S_TMP}, s{S_RB}")
    a(f"s_lshr_b32 s{S_KS}, s{S_TMP2}, 1")
    a(f"s_and_b32 s{S_TMP2}, s{S_TMP2}, 1")
    a(f"s_lshl_b32 s{S_TMP2}, s{S_TMP2}, 3")
    a(f"s_lshr_b32 s{S_CG}, s{S_TMP}, 3")
    a(f"s_and_b32 s{S_RB}, s{S_TMP}, 7")
    a(f"s_add_u32 s{S_RB}, s{S_RB}, s{S_TMP2}")
    a(f"s_cmp_eq_u32 s{S_KS}, {NSPLIT-1}")
    a(f"s_cselect_b32 s{S_NSL}, {(288 - (NSPLIT-1)*SLICE)//2}, {SLICE//2}")
    a(f"v_and_b32 v{V_LANE}, 63, v0")
    a("s_waitcnt lgkmcnt(0)")
    make_srd(a, SRD_W, 4, 5, 0, 4608 * 1152)
    make_srd(a, SRD_H, 12, 13, WS_H, SZ_H)
    make_srd(a, SRD_G, 12, 13, WS_G, NSPLIT * SZ_G1)
    if "d_now" in dbg: a(f"s_mov_b32 s{SRD_W+2}, 0")
    if "d_noh" in dbg: a(f"s_mov_b32 s{SRD_H+2}, 0")
    a(f"s_movk_i32 s{S_TMP}, 1152")
    dma_lane_offset128(a, V_DL, V_LANE, S_TMP, V_T0, V_T1)
    a(f"v_lshlrev_b32 v{V_HL}, 4, v{V_LANE}")
    tr_lane_base128(a, V_LB, V_LANE, V_T0, V_T1)
    a(f"v_xor_b32 v{V_LB+1}, 64, v{V_LB}")
    for j in range(3):
        a(f"s_mul_i32 s{S_TMP}, s{S_WAVE}, 3")
        a(f"s_add_u32 s{S_TMP}, s{S_TMP}, {j}")
        a(f"s_lshr_b32 s{S_TMP2}, s{S_TMP}, 2")
        a(f"s_and_b32 s{S_TMP}, s{S_TMP}, 3")
        a(f"s_mul_i32 s{S_TMP}, s{S_TMP}, {8*1152}")
        a(f"s_lshl_b32 s{S_TMP2}, s{S_TMP2}, 7")
        a(f"s_add_u32 s{S_DO+j}, s{S_TMP}, s{S_TMP2}")
    a(f"s_mul_i32 s{S_M0W}, s{S_WAVE}, 3072")
    a(f"s_mul_i32 s{S_WOFF}, s{S_KS}, {SLICE*16*1152}")
    a(f"s_mul_i32 s{S_TMP}, s{S_CG}, 384")
    a(f"s_add_u32 s{S_WOFF}, s{S_WOFF}, s{S_TMP}")
    a(f"s_lshl_b32 s{S_TMP}, s{S_RB}, 2")
    a(f"s_add_u32 s{S_TMP}, s{S_TMP}, s{S_WAVE}")
    a(f"s_mul_i32 s{S_HOFF}, s{S_TMP}, 288")
    a(f"s_mul_i32 s{S_TMP2}, s{S_KS}, {SLICE}")
    a(f"s_add_u32 s{S_HOFF}, s{S_HOFF}, s{S_TMP2}")
    a(f"s_lshl_b32 s{S_HOFF}, s{S_HOFF}, 10")
    a(f"s_mul_i32 s{S_GOFF}, s{S_TMP}, 18")
    a(f"s_mul_i32 s{S_TMP2}, s{S_KS}, {64*18}")
    a(f"s_add_u32 s{S_GOFF}, s{S_GOFF}, s{S_TMP2}")
    a(f"s_mul_i32 s{S_TMP2}, s{S_CG}, 6")
    a(f"s_add_u32 s{S_GOFF}, s{S_GOFF}, s{S_TMP2}")
    a(f"s_lshl_b32 s{S_GOFF}, s{S_GOFF}, 11")
    a(f"s_and_b32 s{S_TMP}, s{S_RB}, 7")
    a(f"s_lshl_b32 s{S_TMP}, s{S_TMP}, 2")
    a(f"s_add_u32 s{S_TMP}, s{S_TMP}, s{S_WAVE}")
    a(f"s_mul_i32 s{S_TMP}, s{S_TMP}, 6")
    a(f"v_mul_u32_u24 v{V_T0}, 43, v{V_LANE}")
    a(f"v_lshrrev_b32 v{V_T0}, 7, v{V_T0}")
    a(f"v_mul_u32_u24 v{V_T1}, 3, v{V_T0}")
    a(f"v_sub_u32 v{V_T1}, v{V_LANE}, v{V_T1}")
    a(f"v_add_u32 v{V_T0}, s{S_TMP}, v{V_T0}")
    a(f"s_movk_i32 s{S_TMP2}, 1152")
    a(f"v_mul_lo_u32 v{V_PW}, v{V_T0}, s{S_TMP2}")
    a(f"v_lshl_add_u32 v{V_PW}, v{V_T1}, 7, v{V_PW}")
    a(f"v_cmp_gt_u32 vcc, 18, v{V_LANE}")
    a(f"v_mov_b32 v{V_T1}, 0x7fffffff")
    a("s_nop 0")
    a(f"v_cndmask_b32 v{V_PW}, v{V_T1}, v{V_PW}, vcc")
    a(f"s_lshl_b32 s{S_TMP}, s{S_CG}, 12")
    a(f"v_lshlrev_b32 v{V_PH}, 7, v{V_LANE}")
    a(f"v_add_u32 v{V_PH}, s{S_TMP}, v{V_PH}")
    a(f"v_cmp_gt_u32 vcc, 32, v{V_LANE}")
    a("s_nop 1")
    a(f"v_cndmask_b32 v{V_PH}, v{V_T1}, v{V_PH}, vcc")
    def request(ring):
        G = []
        for j in range(3):
            G.append([f"s_add_u32 m0, s{S_M0W}, {ring*DSLOT}" if j == 0 else "s_add_u32 m0, m0, 1024",
                      f"s_add_u32 s{S_TMP}, s{S_WOFF}, s{S_DO+j}",
                      f"buffer_load_dwordx4 v{V_DL}, s[{SRD_W}:{SRD_W+3}], s{S_TMP} offen lds"])
        for k in range(2):
            r = HB + 8 * ring + 4 * k
            g = [f"buffer_load_dwordx4 v[{r}:{r+3}], v{V_HL}, s[{SRD_H}:{SRD_H+3}], s{S_HOFF} offen offset:{k*1024}"]
            if k == 1: g += [f"s_add_u32 s{S_WOFF}, s{S_WOFF}, {32*1152}", f"s_add_u32 s{S_HOFF}, s{S_HOFF}, 2048"]
            G.append(g)
        return G
    def touch(ahead_slots):
        return [[f"s_add_u32 s{S_PW}, s{S_WOFF}, {ahead_slots*32*1152}",
                 f"buffer_load_dword v14, v{V_PW}, s[{SRD_W}:{SRD_W+3}], s{S_PW} offen"],
                [f"s_add_u32 s{S_PH}, s{S_HOFF}, {ahead_slots*2048}",
                 f"buffer_load_dword v14, v{V_PH}, s[{SRD_H}:{SRD_H+3}], s{S_PH} offen"]]
    PF = "dpf" in dbg
    for ring in range(AHEAD):
        for g in request(ring):
            for l in g: a(l)
    if PF:
        for r in range(2):
            for g in touch(6 * r):
                for l in g: a(l)
    for r in range(96): a(f"v_mov_b32 v{ACC+r}, 0")
    stamp_at(1)
    frags = [(k, p, t) for k in range(2) for p in range(3) for t in range(2)]
    def base_regs(ring): return V_B + 2 * (ring & 1)
    def set_base(ring): return [f"v_add_u32 v{base_regs(ring)+t}, {ring*DSLOT}, v{V_LB+t}" for t in range(2)]
    def reads(i, ring):
        k, p, t = frags[i]
        r = WR + 4 * (i % D)
        off = p * 4096 + k * 2048
        return [f"ds_read_b64_tr_b16 v[{r}:{r+1}], v{base_regs(ring)+t} offset:{off}",
                f"ds_read_b64_tr_b16 v[{r+2}:{r+3}], v{base_regs(ring)+t} offset:{off+512}"]
    a(f"s_waitcnt vmcnt({5*(AHEAD-1) + (4 if PF else 0)})")
    a("s_barrier")
    for l in set_base(0): a(l)
    for i in range(D):
        for l in reads(i, 0): a(l)
    a(f"s_mov_b32 s{S_N}, 0")
    a.label(f"{name}_loop")
    assert 12 % D == 0
    for ring in range(NRING):
        nxt = (ring + 1) % NRING
        req = request((ring + AHEAD) % NRING)
        if ring == 0 and PF: req = req + touch(11)
        lab = a.uid(name + "_nr")
        groups = []
        for i in range(12):
            g = []
            if i % 2 == 0: g.append(f"s_waitcnt lgkmcnt({2*(D-2)})")
            k, p, t = frags[i]
            acc = ACC + 16 * (2 * p + t)
            r = WR + 4 * (i % D); h = HB + 8 * ring + 4 * k
            g.append(f"v_mfma_f32_32x32x16_bf16 v[{acc}:{acc+15}], v[{r}:{r+3}], v[{h}:{h+3}], v[{acc}:{acc+15}]")
            j = i + D
            if j == 12:
                g.append(("W", ring))
                g.append("s_barrier")
                g += set_base(nxt)
            g += reads(j % 12, ring if j < 12 else nxt)
            groups.append(g)
        nreq = len(req)
        vm_before = 0
        for i, g in enumerate(groups):
            for l in g:
                if isinstance(l, tuple):
                    pass
                else:
                    pass
        out = []
        slots_for_req = list(range(0, 12 - D)) + list(range(12 - D, 12))
        placed = 0
        for i, g in enumerate(groups):
            for l in g:
                if isinstance(l, tuple):
                    extra = 0
                    if PF:
                        for d in range(2, AHEAD):
                            if (ring + d - AHEAD) % NRING == 0: extra += 2
                        if (ring + 1 - AHEAD) % NRING == 0: extra += 2
                    cnt = 5 * (AHEAD - 2) + extra + placed
                    out.append(("WAIT", cnt))
                else:
                    out.append(l)
            if placed < nreq and i % 2 == 0 or (placed < nreq and nreq - placed >= 12 - i):
                out.append(("REQ", placed)); placed += 1
        while placed < nreq:
            out.append(("REQ", placed)); placed += 1
        if ring > 0:
            a(f"s_add_u32 s{S_TMP2}, s{S_N}, {ring}")
            a(f"s_cmp_ge_u32 s{S_TMP2}, s{S_NSL}")
            a(f"s_cbranch_scc1 {name}_fin")
        a(f"s_add_u32 s{S_TMP2}, s{S_N}, {AHEAD + ring}")
        a(f"s_cmp_lt_u32 s{S_TMP2}, s{S_NSL}")
        a(f"s_cselect_b32 s56, 1, 0")
        for l in out:
            if "d_novm" in dbg and isinstance(l, tuple): continue
            if "d_nobar" in dbg and l == "s_barrier": continue
            if isinstance(l, tuple) and l[0] == "REQ":
                sk = a.uid(name + "_sk")
                a("s_cmp_eq_u32 s56, 0")
                a(f"s_cbranch_scc1 {sk}")
                for x in req[l[1]]: a(x)
                a.label(sk)
            elif isinstance(l, tuple):
                tail = a.uid(name + "_tw")
                a("s_cmp_eq_u32 s56, 0")
                a(f"s_cbranch_scc0 {tail}")
                a("s_waitcnt vmcnt(0)")
                a.label(tail)
                a(f"s_waitcnt vmcnt({l[1]})")
            else:
                a(l)
    a(f"s_add_u32 s{S_N}, s{S_N}, {NRING}")
    a(f"s_cmp_lt_u32 s{S_N}, s{S_NSL}")
    a(f"s_cbranch_scc1 {name}_loop")
    a.label(f"{name}_fin")
    a("s_waitcnt lgkmcnt(0)")
    stamp_at(2)
    a("s_nop 7"); a("s_nop 7")
    for c in range(6):
        r = ACC + 16 * c
        for q in range(8): a(f"v_cvt_pk_bf16_f32 v{r+q}, v{r+2*q}, v{r+2*q+1}")
        a(f"buffer_store_dwordx4 v[{r}:{r+3}], v{V_HL}, s[{SRD_G}:{SRD_G+3}], s{S_GOFF} offen{GST}")
        a(f"buffer_store_dwordx4 v[{r+4}:{r+7}], v{V_HL}, s[{SRD_G}:{SRD_G+3}], s{S_GOFF} offen offset:1024{GST}")
        a(f"s_add_u32 s{S_GOFF}, s{S_GOFF}, 2048")
    stamp_at(3); stamp_at(4); stamp_at(5)
    if stamp:
        a(f"s_memrealtime s[{S_ST+14}:{S_ST+15}]")
        emit_stamp_store(a, S_ST, 8)
```

```python
class Asm:
    def __init__(self):
        self.lines = []
        self._uid = 0
    def __call__(self, s):
        for l in s.split("\n"):
            self.lines.append("    " + l.strip())
    def label(self, name):
        self.lines.append(name + ":")
    def raw(self, s):
        self.lines.append(s)
    def uid(self, prefix):
        self._uid += 1
        return f"{prefix}_{self._uid}"
    def text(self):
        return "\n".join(self.lines) + "\n"

def vr(base, n=1):
    return f"v{base}" if n == 1 else f"v[{base}:{base+n-1}]"
def sr(base, n=1):
    return f"s{base}" if n == 1 else f"s[{base}:{base+n-1}]"

def kernel_header(a, name):
    a.raw(".text")
    a.raw(f".globl {name}")
    a.raw(".p2align 8")
    a.raw(f".type {name},@function")
    a.label(name)

def kernel_descriptor(name, vgpr, accum, sgpr=96):
    return f""".section .rodata,"a"
.p2align 6
.amdhsa_kernel {name}
  .amdhsa_next_free_vgpr {vgpr}
  .amdhsa_next_free_sgpr {sgpr}
  .amdhsa_accum_offset {accum}
  .amdhsa_group_segment_fixed_size 0
  .amdhsa_kernarg_size 80
  .amdhsa_user_sgpr_count 2
  .amdhsa_user_sgpr_kernarg_segment_ptr 1
  .amdhsa_system_sgpr_workgroup_id_x 1
  .amdhsa_float_denorm_mode_32 3
.end_amdhsa_kernel
"""

def make_srd(a, s, base_lo, base_hi, off, size):
    if off:
        a(f"s_add_u32 s{s}, s{base_lo}, {hex(off)}")
        a(f"s_addc_u32 s{s+1}, s{base_hi}, 0")
    else:
        a(f"s_mov_b32 s{s}, s{base_lo}")
        a(f"s_mov_b32 s{s+1}, s{base_hi}")
    a(f"s_mov_b32 s{s+2}, {hex(size)}")
    a(f"s_mov_b32 s{s+3}, 0x20000")

def interleave(main, fillers, start=0, end=None):
    n = len(main)
    if end is None: end = n
    span = max(end - start, 1)
    out = []
    done = 0
    for i, g in enumerate(main):
        out += g
        if start <= i < end:
            want = (len(fillers) * (i - start + 1) + span - 1) // span
            while done < want and done < len(fillers):
                out.append(fillers[done]); done += 1
    out += fillers[done:]
    return out

S_TOK, D, F, NH, DH = 2048, 576, 4608, 32, 18
GRP = 2048 * 32
WS_QK, SZ_QK = 0x0000000, 72 * GRP
WS_VT, SZ_VT = 0x0600000, 576 * 2048 * 2
WS_O,  SZ_O  = 0x0900000, 64 * 48 * 1024
WS_H,  SZ_H  = 0x1000000, 2048 * 4608 * 2
WS_G,  SZ_G1 = 0x2400000, 2048 * 576 * 2
NSPLIT = 5
WS_F,  SZ_F  = 0x3400000, 12288
FLAG_G = 4096
WS_STAMP = 0x8000000
```

```python
from lib import *
import struct

SLOT = 36864
REG = 18432
STG = 4 * SLOT
LDS_BYTES = STG + 16384
LOG2E = 1.4426950408889634

def f2h(x):
    return hex(struct.unpack("<I", struct.pack("<f", x))[0])

def perm_pi(a, dst, src, t0):
    a(f"v_and_b32 v{dst}, 0x13, v{src}")
    a(f"v_and_b32 v{t0}, 4, v{src}")
    a(f"v_lshl_or_b32 v{dst}, v{t0}, 1, v{dst}")
    a(f"v_and_b32 v{t0}, 8, v{src}")
    a(f"v_lshrrev_b32 v{t0}, 1, v{t0}")
    a(f"v_or_b32 v{dst}, v{dst}, v{t0}")

def tr_lane_base128(a, dst, lane, t0, t1):
    a(f"v_lshrrev_b32 v{t0}, 5, v{lane}")
    a(f"v_lshlrev_b32 v{t0}, 3, v{t0}")
    a(f"v_bfe_u32 v{t1}, v{lane}, 2, 2")
    a(f"v_add_u32 v{t0}, v{t0}, v{t1}")
    a(f"v_lshlrev_b32 v{dst}, 7, v{t0}")
    a(f"v_bfe_u32 v{t0}, v{lane}, 3, 1")
    a(f"v_lshl_add_u32 v{dst}, v{t0}, 6, v{dst}")
    a(f"v_bfe_u32 v{t0}, v{lane}, 4, 1")
    a(f"v_lshl_add_u32 v{dst}, v{t0}, 5, v{dst}")
    a(f"v_and_b32 v{t0}, 1, v{lane}")
    a(f"v_lshl_add_u32 v{dst}, v{t0}, 4, v{dst}")
    a(f"v_bfe_u32 v{t0}, v{lane}, 1, 1")
    a(f"v_lshl_add_u32 v{dst}, v{t0}, 3, v{dst}")

def dma_lane_offset128(a, dst, lane, stride_sgpr, t0, t1):
    a(f"v_lshrrev_b32 v{t0}, 3, v{lane}")
    a(f"v_mul_lo_u32 v{dst}, v{t0}, s{stride_sgpr}")
    a(f"v_bfe_u32 v{t0}, v{lane}, 4, 1")
    a(f"v_lshlrev_b32 v{t0}, 2, v{t0}")
    a(f"v_and_b32 v{t1}, 7, v{lane}")
    a(f"v_xor_b32 v{t0}, v{t0}, v{t1}")
    a(f"v_lshl_add_u32 v{dst}, v{t0}, 4, v{dst}")

def stage_rows_via_lds(a, XB, srd, s_rowbyte0, rowbytes, s_lds, v_lane, v_pi, v_hi, tmpv, s_tmp, nchunks, after_issue, per_chunk, npf):
    pass

def x_stage(a, chunks, s_tbw, s_t0, srd, v_lane, s_soff, s_lds, s_cnt):
    V_DA, V_DB = 6, 7
    a(f"v_lshrrev_b32 v{V_DA}, 3, v{v_lane}")
    a(f"s_movk_i32 s{s_soff}, 1152")
    a(f"v_mul_lo_u32 v{V_DA}, v{V_DA}, s{s_soff}")
    a(f"v_lshrrev_b32 v8, 4, v{v_lane}")
    a(f"v_and_b32 v9, 7, v{v_lane}")
    a(f"v_xor_b32 v8, v8, v9")
    a(f"v_xor_b32 v9, 4, v8")
    a(f"v_lshl_add_u32 v{V_DB}, v9, 4, v{V_DA}")
    a(f"v_lshl_add_u32 v{V_DA}, v8, 4, v{V_DA}")
    a(f"s_mul_i32 s{s_soff}, s{s_t0}, 1152")
    a(f"s_mul_i32 s{s_lds}, s{s_tbw}, {SLOT}")
    for c in chunks:
        for i in range(4):
            if i == 0: a(f"s_add_u32 m0, s{s_lds}, {c*4096}")
            else: a(f"s_add_u32 m0, m0, 1024")
            a(f"s_add_u32 s{s_cnt}, s{s_soff}, {c*128 + i*8*1152}")
            a(f"buffer_load_dwordx4 v{V_DA if i % 2 == 0 else V_DB}, s[{srd}:{srd+3}], s{s_cnt} offen lds")

def emit_stamp_store(a, s0, n):
    a("s_waitcnt lgkmcnt(0)")
    a("s_lshl_b32 s46, s2, 3")
    a("s_add_u32 s46, s46, s3")
    a("s_lshl_b32 s46, s46, 6")
    a(f"s_add_u32 s56, s12, {hex(WS_STAMP)}")
    a("s_addc_u32 s57, s13, 0")
    a("s_add_u32 s56, s56, s46")
    a("s_addc_u32 s57, s57, 0")
    a("v_mov_b32 v1, 0")
    for i in range(n):
        a(f"v_mov_b32 v2, s{s0+2*i}")
        a(f"v_mov_b32 v3, s{s0+2*i+1}")
        a(f"global_store_dwordx2 v1, v[2:3], s[56:57] offset:{8*i}")
        a("s_nop 1")
    a("s_waitcnt vmcnt(0)")

def gen_k1(name="k1_kernel", D=6, stamp=False, dbg="", PD=6):
    R = 8
    STAGE = "stage" in dbg
    STF = " sc0 sc1"
    for k, v in (("hplain", ""), ("hsc1", " sc1"), ("hsc0", " sc0"), ("hnt", " nt"), ("hntsc1", " sc1 nt")):
        if k + "," in dbg + ",": STF = v
    a = Asm()
    kernel_header(a, name)
    END = name + "_end"
    S_WAVE, S_G, S_RB = 3, 14, 15
    SRD_X, SRD_W, SRD_WQ, SRD_H, SRD_QK, SRD_VT = 16, 20, 24, 28, 32, 36
    S_NQUAD, S_Q0, S_NDT, S_DT0 = 40, 41, 42, 43
    S_SOFF, S_LDS, S_CNT, S_TMP, S_TMP2 = 44, 45, 46, 47, 48
    S_HOFF, S_TILE, S_EPMUL, S_EPOFF = 49, 50, 51, 52
    S_ROT = 54
    SRD_EP = 56
    S_ST = 60
    V_LANE, V_N, V_HI, V_T0, V_T1 = 1, 2, 3, 4, 5
    V_LB, V_RA = 6, 8
    V_HADDR, V_QKADDR, V_VTADDR, V_EPADDR, V_PI = 11, 12, 13, 14, 15
    XB, ACC, WR = 16, 160, 224
    TMP = WR + 4 * D
    assert TMP + 8 <= 256
    def stamp_at(i):
        if stamp: a(f"s_memtime s[{S_ST+2*i}:{S_ST+2*i+1}]")
    a("s_cmp_ge_u32 s2, 256")
    a(f"s_cbranch_scc1 {END}")
    a("s_load_dwordx4 s[4:7], s[0:1], 0")
    a("s_load_dwordx4 s[8:11], s[0:1], 32")
    a("s_load_dwordx2 s[12:13], s[0:1], 72")
    stamp_at(0)
    if stamp: a(f"s_memrealtime s[{S_ST+12}:{S_ST+13}]")
    a("v_lshrrev_b32 v1, 6, v0")
    a("s_and_b32 s14, s2, 7")
    a(f"v_readfirstlane_b32 s{S_WAVE}, v1")
    a("s_lshr_b32 s15, s2, 3")
    a(f"s_lshr_b32 s{S_TMP}, s14, 1")
    a(f"s_lshl_b32 s{S_TMP}, s{S_TMP}, 2")
    a(f"s_lshr_b32 s{S_TMP2}, s15, 3")
    a(f"s_add_u32 s{S_TMP}, s{S_TMP}, s{S_TMP2}")
    a("s_and_b32 s14, s14, 1")
    a("s_lshl_b32 s14, s14, 3")
    a("s_and_b32 s15, s15, 7")
    a(f"s_add_u32 s{S_RB}, s14, s15")
    a(f"s_mov_b32 s{S_G}, s{S_TMP}")
    a(f"v_and_b32 v{V_LANE}, 63, v0")
    a(f"s_lshr_b32 s{S_TMP}, s{S_G}, 1")
    a(f"s_and_b32 s{S_TMP2}, s{S_G}, 1")
    a(f"s_sub_u32 s{S_NQUAD}, 5, s{S_TMP2}")
    a(f"s_mul_i32 s{S_Q0}, s{S_TMP}, 9")
    a(f"s_mul_i32 s{S_CNT}, s{S_TMP2}, 5")
    a(f"s_add_u32 s{S_Q0}, s{S_Q0}, s{S_CNT}")
    a(f"s_min_u32 s{S_CNT}, s{S_TMP}, 3")
    a(f"s_mul_i32 s{S_DT0}, s{S_TMP}, 3")
    a(f"s_add_u32 s{S_DT0}, s{S_DT0}, s{S_CNT}")
    a(f"s_add_u32 s{S_DT0}, s{S_DT0}, s{S_TMP2}")
    a(f"s_cmp_lt_u32 s{S_TMP}, 3")
    a(f"s_cselect_b32 s{S_NDT}, 3, 2")
    a(f"s_cmp_eq_u32 s{S_TMP2}, 0")
    a(f"s_cselect_b32 s{S_NDT}, 1, s{S_NDT}")
    a("s_waitcnt lgkmcnt(0)")
    if "pst" in dbg: stamp_at(1)
    a(f"s_cmp_ge_u32 s{S_WAVE}, 4")
    a(f"s_cbranch_scc1 {name}_loader")

    if "cprio" in dbg: a("s_setprio 3")
    make_srd(a, SRD_X, 4, 5, 0, 2048 * 1152)
    a(f"v_and_b32 v{V_N}, 31, v{V_LANE}")
    a(f"v_lshrrev_b32 v{V_HI}, 5, v{V_LANE}")
    perm_pi(a, V_PI, V_N, V_T1)
    a(f"s_lshl_b32 s{S_TMP}, s{S_RB}, 2")
    a(f"s_add_u32 s{S_TMP}, s{S_TMP}, s{S_WAVE}")
    a(f"s_lshl_b32 s{S_TMP2}, s{S_TMP}, 5")
    if "lat" in dbg:
        a(f"v_lshlrev_b32 v20, 7, v{V_LANE}")
        a(f"s_mul_i32 s{S_CNT}, s{S_TMP2}, 1152")
        a(f"buffer_load_dword v21, v20, s[{SRD_X}:{SRD_X+3}], s{S_CNT} offen")
        a("s_waitcnt vmcnt(0)")
        stamp_at(2)
        a(f"s_add_u32 s{S_CNT}, s{S_CNT}, 8192")
        a(f"buffer_load_dword v21, v20, s[{SRD_X}:{SRD_X+3}], s{S_CNT} offen")
        a("s_waitcnt vmcnt(0)")
        stamp_at(3)
    STARTS = (0, 2, 4, 7)
    a(f"s_and_b32 s{S_ROT}, s{S_G}, 3")
    for j, c0 in enumerate(STARTS):
        lab = f"{name}_xs{j}"
        if j > 0: a.label(lab)
        if j < 3:
            a(f"s_cmp_eq_u32 s{S_ROT}, {j}")
            a(f"s_cbranch_scc0 {name}_xs{j+1}")
        x_stage(a, [(c0 + i) % 9 for i in range(9)], S_WAVE, S_TMP2, SRD_X, V_LANE, S_SOFF, S_LDS, S_CNT)
        if j < 3: a(f"s_branch {name}_xsd")
    a.label(f"{name}_xsd")
    stamp_at(4 if "lat" in dbg else (2 if "pst" in dbg else 1))
    make_srd(a, SRD_H, 12, 13, WS_H, SZ_H)
    make_srd(a, SRD_QK, 12, 13, WS_QK, SZ_QK)
    make_srd(a, SRD_VT, 12, 13, WS_VT, SZ_VT)
    a(f"v_add_u32 v{V_T1}, s{S_TMP2}, v{V_PI}")
    a(f"v_lshlrev_b32 v{V_QKADDR}, 5, v{V_T1}")
    a(f"v_lshl_add_u32 v{V_QKADDR}, v{V_HI}, 4, v{V_QKADDR}")
    a(f"v_lshlrev_b32 v{V_VTADDR}, 12, v{V_PI}")
    a(f"v_lshl_add_u32 v{V_VTADDR}, v{V_HI}, 4, v{V_VTADDR}")
    a(f"s_lshl_b32 s{S_SOFF}, s{S_TMP2}, 1")
    a(f"v_add_u32 v{V_VTADDR}, s{S_SOFF}, v{V_VTADDR}")
    a(f"v_lshlrev_b32 v{V_HADDR}, 4, v{V_LANE}")
    a(f"s_mul_i32 s{S_HOFF}, s{S_TMP}, {288*1024}")
    a(f"s_lshl_b32 s{S_SOFF}, s{S_Q0}, 12")
    a(f"s_add_u32 s{S_HOFF}, s{S_HOFF}, s{S_SOFF}")
    if STAGE:
        a(f"s_lshl_b32 s{S_SOFF}, s{S_NQUAD}, 12")
        a(f"s_add_u32 s{S_HOFF}, s{S_HOFF}, s{S_SOFF}")
        a(f"s_sub_u32 s{S_HOFF}, s{S_HOFF}, 2048")
    V_STG = 10
    a(f"s_lshl_b32 s{S_SOFF}, s{S_WAVE}, 11")
    a(f"s_add_u32 s{S_SOFF}, s{S_SOFF}, {STG}")
    a(f"v_lshl_add_u32 v{V_STG}, v{V_LANE}, 4, s{S_SOFF}")
    tr_lane_base128(a, V_LB, V_LANE, V_T0, V_T1)
    a(f"v_xor_b32 v{V_LB+1}, 64, v{V_LB}")
    SUM, SQ, ONES = ACC, ACC + 2, ACC + 4
    for i in range(4): a(f"v_mov_b32 v{SUM+i}, 0")
    a(f"v_mov_b32 v{ONES}, 0x3f803f80")
    XA = ACC + 8
    a(f"v_lshrrev_b32 v{XA+4}, 1, v{V_PI}")
    a(f"v_and_b32 v{XA+4}, 7, v{XA+4}")
    a(f"v_xor_b32 v{XA+4}, v{XA+4}, v{V_HI}")
    a(f"v_lshlrev_b32 v{XA+5}, 7, v{V_PI}")
    a(f"v_add_u32 v{XA+5}, s{S_LDS}, v{XA+5}")
    for sub in range(4):
        a(f"v_xor_b32 v{XA+sub}, {2*sub}, v{XA+4}")
        a(f"v_lshl_add_u32 v{XA+sub}, v{XA+sub}, 4, v{XA+5}")
    def stats(c):
        for r in range(XB + 16 * c, XB + 16 * c + 16):
            a(f"v_dot2c_f32_bf16 v{SUM + (r & 1)}, v{r}, v{ONES}")
            a(f"v_dot2c_f32_bf16 v{SQ + (r & 1)}, v{r}, v{r}")
    def xreads(c):
        for sub in range(4):
            r = XB + 16 * c + 4 * sub
            a(f"ds_read_b128 v[{r}:{r+3}], v{XA+sub} offset:{c*4096}")
    for j, c0 in enumerate(STARTS):
        if j > 0: a.label(f"{name}_xr{j}")
        if j < 3:
            a(f"s_cmp_eq_u32 s{S_ROT}, {j}")
            a(f"s_cbranch_scc0 {name}_xr{j+1}")
        order = [(c0 + i) % 9 for i in range(9)]
        for i, c in enumerate(order):
            a(f"s_waitcnt vmcnt({32 - 4*i})")
            if "pst" in dbg and "lat" not in dbg and i == 0: stamp_at(3)
            if "pst" in dbg and "lat" not in dbg and i == 8: stamp_at(4)
            xreads(c)
            if i > 0:
                a("s_waitcnt lgkmcnt(4)")
                stats(order[i - 1])
        a("s_waitcnt lgkmcnt(0)")
        a("s_barrier")
        if "pst" in dbg: stamp_at(5)
        stats(order[8])
        if j < 3: a(f"s_branch {name}_xrd")
    a.label(f"{name}_xrd")
    if "pst" not in dbg: stamp_at(2)
    a("s_nop 2")
    a(f"v_add_f32 v{SUM}, v{SUM}, v{SUM+1}")
    a(f"v_add_f32 v{SQ}, v{SQ}, v{SQ+1}")
    a("s_nop 0")
    a(f"v_mov_b32 v{SUM+1}, v{SUM}")
    a(f"v_mov_b32 v{SQ+1}, v{SQ}")
    a("s_nop 1")
    a(f"v_permlane32_swap_b32 v{SUM}, v{SUM+1}")
    a(f"v_permlane32_swap_b32 v{SQ}, v{SQ+1}")
    a("s_nop 1")
    a(f"v_add_f32 v{SUM}, v{SUM}, v{SUM+1}")
    a(f"v_add_f32 v{SQ}, v{SQ}, v{SQ+1}")
    a(f"v_mul_f32 v{SUM}, {f2h(1.0/576)}, v{SUM}")
    a(f"v_mul_f32 v{SQ}, {f2h(1.0/576)}, v{SQ}")
    a(f"v_fma_f32 v{SQ}, -v{SUM}, v{SUM}, v{SQ}")
    a(f"v_max_f32 v{SQ}, 0, v{SQ}")
    a(f"v_add_f32 v{SQ}, {f2h(1e-5)}, v{SQ}")
    a(f"v_rsq_f32 v{SQ}, v{SQ}")
    a("s_nop 0")
    RR, CC = TMP + 4, TMP + 6
    a(f"v_mul_f32 v{RR}, {f2h(LOG2E)}, v{SQ}")
    a(f"v_mov_b32 v{RR+1}, v{RR}")
    a(f"v_mul_f32 v{CC}, v{SUM}, v{RR}")
    a(f"v_sub_f32 v{CC}, 0, v{CC}")
    a(f"v_mov_b32 v{CC+1}, v{CC}")
    def normalise(ks):
        L = []
        T = TMP
        for r in range(XB + 4 * ks, XB + 4 * ks + 4, 2):
            for j in range(2):
                L.append(f"v_lshlrev_b32 v{T+2*j}, 16, v{r+j}")
                L.append(f"v_and_b32 v{T+2*j+1}, 0xffff0000, v{r+j}")
            for j in range(2):
                L.append(f"v_pk_fma_f32 v[{T+2*j}:{T+2*j+1}], v[{T+2*j}:{T+2*j+1}], v[{RR}:{RR+1}], v[{CC}:{CC+1}]")
            for j in range(2):
                L.append(f"v_cvt_pk_bf16_f32 v{r+j}, v{T+2*j}, v{T+2*j+1}")
        return L
    NPRE = 3 if "jit" in dbg else 36
    for ks in range(NPRE):
        for l in normalise(ks): a(l)
    if "pst" not in dbg: stamp_at(3)

    def base_reg(slot): return V_RA + (slot & 1)
    def set_base(slot, t): return f"v_add_u32 v{base_reg(slot)}, {slot*SLOT}, v{V_LB+t}"
    def frag_reads(i, slot):
        r = WR + 4 * (i % D)
        j = i % 18
        off = (j & 1) * REG + (j >> 1) * 2048
        return [f"ds_read_b64_tr_b16 v[{r}:{r+1}], v{base_reg(slot)} offset:{off}",
                f"ds_read_b64_tr_b16 v[{r+2}:{r+3}], v{base_reg(slot)} offset:{off+512}"]
    def silu_epilogue(st, direct=False):
        g, u = st, st + 16
        buf = 0 if st == ACC else 1
        direct = direct or not STAGE
        L = []
        for r in range(0, 16, 2):
            t = TMP + 2 * ((r // 2) % 4)
            L.append(f"v_exp_f32 v{t}, -v{g+r}")
            L.append(f"v_exp_f32 v{t+1}, -v{g+r+1}")
            L.append(f"v_mul_f32 v{u+r}, v{g+r}, v{u+r}")
            L.append(f"v_mul_f32 v{u+r+1}, v{g+r+1}, v{u+r+1}")
            L.append(f"v_add_f32 v{t}, 1.0, v{t}")
            L.append(f"v_add_f32 v{t+1}, 1.0, v{t+1}")
            L.append(f"v_rcp_f32 v{t}, v{t}")
            L.append(f"v_rcp_f32 v{t+1}, v{t+1}")
            if r > 0:
                L.append(f"v_cvt_pk_bf16_f32 v{u + r//2 - 1}, v{g+r-2}, v{g+r-1}")
            else:
                L.append("s_nop 0")
            L.append(f"v_mul_f32 v{g+r}, v{u+r}, v{t}")
            L.append(f"v_mul_f32 v{g+r+1}, v{u+r+1}, v{t+1}")
            if r == 8:
                if direct: L.append(f"buffer_store_dwordx4 v[{u}:{u+3}], v{V_HADDR}, s[{SRD_H}:{SRD_H+3}], s{S_HOFF} offen{STF}")
                else: L.append(f"ds_write_b128 v{V_STG}, v[{u}:{u+3}] offset:{buf*8192}")
        L.append(f"v_cvt_pk_bf16_f32 v{u+7}, v{g+14}, v{g+15}")
        if direct: L.append(f"buffer_store_dwordx4 v[{u+4}:{u+7}], v{V_HADDR}, s[{SRD_H}:{SRD_H+3}], s{S_HOFF} offen offset:1024{STF}")
        else: L.append(f"ds_write_b128 v{V_STG}, v[{u+4}:{u+7}] offset:{buf*8192+1024}")
        if not STAGE: L.append(f"s_add_u32 s{S_HOFF}, s{S_HOFF}, 2048")
        return L
    S_EPOFF2 = 53
    def tile_epilogue(acc):
        L = []
        for r in range(0, 16, 2):
            L.append(f"v_mul_f32 v{acc+r}, s{S_EPMUL}, v{acc+r}")
            L.append(f"v_mul_f32 v{acc+r+1}, s{S_EPMUL}, v{acc+r+1}")
            L.append(f"v_cvt_pk_bf16_f32 v{acc + r//2}, v{acc+r}, v{acc+r+1}")
        L.append(f"buffer_store_dwordx4 v[{acc}:{acc+3}], v{V_EPADDR}, s[{SRD_EP}:{SRD_EP+3}], s{S_EPOFF} offen{STF}")
        L.append(f"buffer_store_dwordx4 v[{acc+4}:{acc+7}], v{V_EPADDR}, s[{SRD_EP}:{SRD_EP+3}], s{S_EPOFF2} offen{STF}")
        return L
    def start_reads(slot, t, barrier):
        if barrier: a("s_barrier")
        a(set_base(slot, t))
        for i in range(D):
            for l in frag_reads(i, slot): a(l)
    def emit_job(slot0, t, nxt, mfma_of, fillers, placed=None):
        groups = []
        total = 36 + (D if nxt else 0)
        for i in range(36):
            g = []
            if i % 2 == 0:
                issued_upto = min(i + D - 1, total - 1)
                g.append(f"s_waitcnt lgkmcnt({2 * (issued_upto - (i + 1))})")
            g.append(mfma_of(i))
            j = i + D
            if j < total:
                if j == 18:
                    if t == 0: g.append("s_barrier")
                    g.append(set_base(slot0 + 1, t))
                if j == 36:
                    if nxt[2]: g.append("s_barrier")
                    g.append(set_base(nxt[0], nxt[1]))
                slot = slot0 + (j // 18) if j < 36 else nxt[0]
                g += frag_reads(j % 36, slot)
            groups.append(g)
        if placed:
            for pos, ins in placed: groups[min(pos, 35)] += ins
        if "noepi" in dbg: fillers = []
        for l in interleave(groups, fillers, start=3, end=34):
            if "nostore" in dbg and l.startswith("buffer_store"): continue
            if "notr" in dbg and (l.startswith("ds_read") or l.startswith("s_waitcnt lgkm")): continue
            if "halftr" in dbg and l.startswith("ds_read") and ("offset:" in l) and (int(l.split("offset:")[1]) // 2048) % 2 == 1: continue
            a(l)
    assert 36 % D == 0 and 18 % D == 0
    def pair_mfma(st, kh):
        def f(i):
            s, j = divmod(i, 18)
            ks = 18 * kh + 9 * s + (j >> 1)
            acc = st + 16 * (j & 1)
            c = "0" if (kh == 0 and i < 2) else f"v[{acc}:{acc+15}]"
            r = WR + 4 * (i % D)
            return f"v_mfma_f32_32x32x16_bf16 v[{acc}:{acc+15}], v[{r}:{r+3}], v[{XB+4*ks}:{XB+4*ks+3}], {c}"
        return f
    def tile_mfma(acc, swap):
        def f(i):
            s, j = divmod(i, 18)
            ks = 18 * s + 9 * (j & 1) + (j >> 1)
            c = "0" if i == 0 else f"v[{acc}:{acc+15}]"
            r = WR + 4 * (i % D)
            w = f"v[{r}:{r+3}]"; x = f"v[{XB+4*ks}:{XB+4*ks+3}]"
            A, B = (x, w) if swap else (w, x)
            return f"v_mfma_f32_32x32x16_bf16 v[{acc}:{acc+15}], {A}, {B}, {c}"
        return f
    SA, SB = ACC, ACC + 32
    start_reads(0, 0, True)
    def jit(first, last, lead):
        return [(max(0, 2 * (ks - first) + lead), normalise(ks)) for ks in range(first, last)]
    emit_job(0, 0, (0, 1, False), pair_mfma(SA, 0), [], placed=[(2 * (ks - NPRE), normalise(ks)) for ks in range(min(NPRE, 18), 18)])
    emit_job(0, 1, (2, 0, True), pair_mfma(SB, 0), [], placed=[(2 * (ks - 18), normalise(ks)) for ks in range(max(NPRE, 18), 36)])
    a(f"s_mov_b32 s{S_CNT}, s{S_NQUAD}")
    a(f"s_branch {name}_q2")
    a.label(f"{name}_quadloop")
    emit_job(0, 0, (0, 1, False), pair_mfma(SA, 0), silu_epilogue(SB))
    emit_job(0, 1, (2, 0, True), pair_mfma(SB, 0), [])
    a.label(f"{name}_q2")
    emit_job(2, 0, (2, 1, False), pair_mfma(SA, 1), [])
    emit_job(2, 1, (0, 0, True), pair_mfma(SB, 1), silu_epilogue(SA))
    a(f"s_sub_u32 s{S_CNT}, s{S_CNT}, 1")
    a(f"s_cmp_lg_u32 s{S_CNT}, 0")
    a(f"s_cbranch_scc1 {name}_quadloop")
    if "pst" not in dbg: stamp_at(4)
    a(f"s_lshl_b32 s{S_TILE}, s{S_DT0}, 1")
    QSC = 1.0 / (18 ** 0.5)
    def latch_epilogue():
        lv, le, lq = a.uid(name + "_lv"), a.uid(name + "_le"), a.uid(name + "_lq")
        a(f"s_cmp_ge_u32 s{S_TILE}, 36")
        a(f"s_cbranch_scc1 {lv}")
        a(f"s_lshl_b32 s{S_EPOFF}, s{S_TILE}, 17")
        a(f"s_add_u32 s{S_EPOFF2}, s{S_EPOFF}, {GRP}")
        a(f"s_mov_b32 s{S_EPMUL}, {f2h(QSC)}")
        a(f"s_cmp_lt_u32 s{S_TILE}, 18")
        a(f"s_cbranch_scc1 {lq}")
        a(f"s_mov_b32 s{S_EPMUL}, {f2h(1.0/LOG2E)}")
        a.label(lq)
        make_srd(a, SRD_EP, 12, 13, WS_QK, SZ_QK)
        a(f"v_mov_b32 v{V_EPADDR}, v{V_QKADDR}")
        a(f"s_branch {le}")
        a.label(lv)
        a(f"s_sub_u32 s{S_EPOFF}, s{S_TILE}, 36")
        a(f"s_lshl_b32 s{S_EPOFF}, s{S_EPOFF}, 17")
        a(f"s_add_u32 s{S_EPOFF2}, s{S_EPOFF}, 32")
        a(f"s_mov_b32 s{S_EPMUL}, {f2h(1.0/LOG2E)}")
        make_srd(a, SRD_EP, 12, 13, WS_VT, SZ_VT)
        a(f"v_mov_b32 v{V_EPADDR}, v{V_VTADDR}")
        a.label(le)
        a(f"s_add_u32 s{S_TILE}, s{S_TILE}, 1")
    ring = [SA, SA + 16, SB, SB + 16]
    for d in range(3):
        slot0 = (2 * d) % 4
        if d > 0:
            a(f"s_cmp_le_u32 s{S_NDT}, {d}")
            a(f"s_cbranch_scc1 {name}_fin{d}")
            start_reads(slot0, 0, True)
        for t in range(2):
            k = 2 * d + t
            acc = ring[k % 4]
            fill = silu_epilogue(SB, direct=True) if k == 0 else tile_epilogue(ring[(k - 1) % 4])
            nxt = (slot0, 1, False) if t == 0 else None
            lv, le = a.uid(name + "_v"), a.uid(name + "_e")
            a(f"s_cmp_ge_u32 s{S_TILE}, 36")
            a(f"s_cbranch_scc1 {lv}")
            emit_job(slot0, t, nxt, tile_mfma(acc, False), fill)
            a(f"s_branch {le}")
            a.label(lv)
            emit_job(slot0, t, nxt, tile_mfma(acc, True), fill)
            a.label(le)
            latch_epilogue()
    for d in (3, 2, 1):
        if d < 3: a.label(f"{name}_fin{d}")
        a("s_nop 7"); a("s_nop 3")
        for l in tile_epilogue(ring[(2 * d - 1) % 4]): a(l)
        a(f"s_branch {name}_done")
    a.label(f"{name}_done")
    if "pst" not in dbg: stamp_at(5)
    if stamp:
        a(f"s_memrealtime s[{S_ST+14}:{S_ST+15}]")
        emit_stamp_store(a, S_ST, 8)
    a("s_endpgm")

    a.label(f"{name}_loader")
    lz = a.uid(name + "_lz")
    a("s_cmp_eq_u32 s2, 0")
    a(f"s_cbranch_scc0 {lz}")
    make_srd(a, 28, 12, 13, WS_F, SZ_F)
    a(f"v_lshlrev_b32 v20, 4, v0")
    a(f"v_subrev_u32 v20, 4096, v20")
    for r in range(4): a(f"v_mov_b32 v{24+r}, 0")
    for r in range(3):
        a(f"s_mov_b32 s32, {r*4096}")
        a(f"buffer_store_dwordx4 v[24:27], v20, s[28:31], s32 offen sc0 sc1")
    a.label(lz)
    S_NS, S_N, S_M, S_B13, S_BQ, S_LB, S_PFI = 44, 45, 49, 50, 51, 52, 53
    S_SO = 54
    V_L13, V_LQ, V_P13, V_PQ = 10, 11, 12, 13
    a(f"s_sub_u32 s{S_WAVE}, s{S_WAVE}, 4")
    a(f"s_cmp_ge_u32 s{S_WAVE}, 2")
    a(f"s_cselect_b32 s{SRD_W}, s10, s8")
    a(f"s_cselect_b32 s{SRD_W+1}, s11, s9")
    a(f"s_mov_b32 s{SRD_W+2}, {hex(576*4608*2)}")
    a(f"s_mov_b32 s{SRD_W+3}, 0x20000")
    make_srd(a, SRD_WQ, 6, 7, 0, 576 * 1728 * 2)
    a(f"s_movk_i32 s{S_TMP}, 9216")
    dma_lane_offset128(a, V_L13, V_LANE, S_TMP, V_T0, V_T1)
    a(f"s_movk_i32 s{S_TMP2}, 3456")
    dma_lane_offset128(a, V_LQ, V_LANE, S_TMP2, V_T0, V_T1)
    a(f"s_and_b32 s{S_PFI}, s{S_RB}, 7")
    a(f"s_mul_i32 s{S_PFI}, s{S_PFI}, 9")
    a(f"v_add_u32 v{V_T0}, s{S_PFI}, v{V_LANE}")
    a(f"v_mul_lo_u32 v{V_P13}, v{V_T0}, s{S_TMP}")
    a(f"v_mul_lo_u32 v{V_PQ}, v{V_T0}, s{S_TMP2}")
    a(f"v_cmp_gt_u32 vcc, 9, v{V_LANE}")
    a(f"v_mov_b32 v{V_T1}, 0x7fffffff")
    a("s_nop 1")
    a(f"v_cndmask_b32 v{V_P13}, v{V_T1}, v{V_P13}, vcc")
    a(f"v_cndmask_b32 v{V_PQ}, v{V_T1}, v{V_PQ}, vcc")
    a(f"s_and_b32 s{S_TMP}, s{S_WAVE}, 1")
    a(f"s_mul_i32 s{S_B13}, s{S_TMP}, {72*9216}")
    a(f"s_lshl_b32 s{S_TMP2}, s{S_Q0}, 7")
    a(f"s_add_u32 s{S_B13}, s{S_B13}, s{S_TMP2}")
    a(f"s_mul_i32 s{S_BQ}, s{S_TMP}, {72*3456}")
    a(f"s_lshr_b32 s{S_TMP}, s{S_WAVE}, 1")
    a(f"s_mul_i32 s{S_TMP}, s{S_TMP}, {144*3456}")
    a(f"s_add_u32 s{S_BQ}, s{S_BQ}, s{S_TMP}")
    a(f"s_lshl_b32 s{S_TMP2}, s{S_DT0}, 7")
    a(f"s_add_u32 s{S_BQ}, s{S_BQ}, s{S_TMP2}")
    a(f"s_mul_i32 s{S_LB}, s{S_WAVE}, 9216")
    S_HB, S_HO = 55, 56
    V_SA, V_HA = 14, 15
    make_srd(a, SRD_H, 12, 13, WS_H, SZ_H)
    a(f"s_lshl_b32 s{S_TMP}, s{S_RB}, 2")
    a(f"s_add_u32 s{S_TMP}, s{S_TMP}, s{S_WAVE}")
    a(f"s_mul_i32 s{S_HB}, s{S_TMP}, {288*1024}")
    a(f"s_lshl_b32 s{S_TMP}, s{S_Q0}, 12")
    a(f"s_add_u32 s{S_HB}, s{S_HB}, s{S_TMP}")
    a(f"v_lshlrev_b32 v{V_HA}, 4, v{V_LANE}")
    a(f"s_lshl_b32 s{S_TMP}, s{S_WAVE}, 11")
    a(f"s_add_u32 s{S_TMP}, s{S_TMP}, {STG}")
    a(f"v_add_u32 v{V_SA}, s{S_TMP}, v{V_HA}")
    def hand_over():
        ld = a.uid(name + "_ho")
        a(f"s_and_b32 s{S_TMP}, s{S_N}, 3")
        a(f"s_sub_u32 s{S_TMP}, s{S_TMP}, 1")
        a(f"s_cmp_gt_u32 s{S_TMP}, 1")
        a(f"s_cbranch_scc1 {ld}")
        a(f"s_lshl_b32 s{S_TMP2}, s{S_TMP}, 13")
        a(f"v_add_u32 v16, s{S_TMP2}, v{V_SA}")
        a(f"ds_read_b128 v[24:27], v16")
        a(f"ds_read_b128 v[28:31], v16 offset:1024")
        a(f"s_lshr_b32 s{S_HO}, s{S_N}, 2")
        a(f"s_lshl_b32 s{S_HO}, s{S_HO}, 1")
        a(f"s_add_u32 s{S_HO}, s{S_HO}, s{S_TMP}")
        a(f"s_sub_u32 s{S_HO}, s{S_HO}, 2")
        a(f"s_lshl_b32 s{S_TMP2}, s{S_NQUAD}, 1")
        a(f"s_sub_u32 s{S_TMP2}, s{S_TMP2}, 1")
        a(f"s_cmp_lt_u32 s{S_HO}, s{S_TMP2}")
        a(f"s_cselect_b32 s{S_TMP2}, 1, 0")
        a(f"s_lshl_b32 s{S_HO}, s{S_HO}, 11")
        a(f"s_add_u32 s{S_HO}, s{S_HO}, s{S_HB}")
        a(f"s_cmp_eq_u32 s{S_TMP2}, 1")
        a(f"s_cselect_b32 s{S_HO}, s{S_HO}, 0x7ff00000")
        a("s_waitcnt lgkmcnt(0)")
        a(f"buffer_store_dwordx4 v[24:27], v{V_HA}, s[{SRD_H}:{SRD_H+3}], s{S_HO} offen{STF}")
        a(f"buffer_store_dwordx4 v[28:31], v{V_HA}, s[{SRD_H}:{SRD_H+3}], s{S_HO} offen offset:1024{STF}")
        a.label(ld)
    a(f"s_lshl_b32 s{S_NS}, s{S_NQUAD}, 1")
    a(f"s_add_u32 s{S_NS}, s{S_NS}, s{S_NDT}")
    a(f"s_lshl_b32 s{S_NS}, s{S_NS}, 1")
    def slot_offset(m_sgpr, lab_q, lab_done):
        a(f"s_lshl_b32 s{S_TMP}, s{S_NQUAD}, 2")
        a(f"s_cmp_ge_u32 s{m_sgpr}, s{S_TMP}")
        a(f"s_cbranch_scc1 {lab_q}")
        a(f"s_lshr_b32 s{S_TMP}, s{m_sgpr}, 2")
        a(f"s_lshl_b32 s{S_TMP}, s{S_TMP}, 7")
        a(f"s_and_b32 s{S_TMP2}, s{m_sgpr}, 3")
        a(f"s_mul_i32 s{S_TMP2}, s{S_TMP2}, {144*9216}")
        a(f"s_add_u32 s{S_SO}, s{S_B13}, s{S_TMP}")
        a(f"s_add_u32 s{S_SO}, s{S_SO}, s{S_TMP2}")
    def slot_offset_q(m_sgpr):
        a(f"s_sub_u32 s{S_TMP}, s{m_sgpr}, s{S_TMP}")
        a(f"s_and_b32 s{S_TMP2}, s{S_TMP}, 1")
        a(f"s_mul_i32 s{S_TMP2}, s{S_TMP2}, {288*3456}")
        a(f"s_lshr_b32 s{S_TMP}, s{S_TMP}, 1")
        a(f"s_lshl_b32 s{S_TMP}, s{S_TMP}, 7")
        a(f"s_add_u32 s{S_SO}, s{S_BQ}, s{S_TMP}")
        a(f"s_add_u32 s{S_SO}, s{S_SO}, s{S_TMP2}")
    def dma_batch(vo, srd, step):
        for j in range(9):
            if "noload" not in dbg:
                a(f"buffer_load_dwordx4 v{vo}, s[{srd}:{srd+3}], s{S_SO} offen lds")
            if j < 8:
                a(f"s_add_u32 m0, m0, 1024")
                a(f"s_add_u32 s{S_SO}, s{S_SO}, {step}")
    def issue(m_sgpr):
        lq, ld = a.uid(name + "_iq"), a.uid(name + "_id")
        a(f"s_and_b32 s{S_TMP}, s{m_sgpr}, 3")
        a(f"s_mul_i32 s{S_TMP}, s{S_TMP}, {SLOT}")
        a(f"s_add_u32 m0, s{S_TMP}, s{S_LB}")
        slot_offset(m_sgpr, lq, ld)
        dma_batch(V_L13, SRD_W, 8 * 9216)
        a(f"s_branch {ld}")
        a.label(lq)
        slot_offset_q(m_sgpr)
        dma_batch(V_LQ, SRD_WQ, 8 * 3456)
        a.label(ld)
    def prefetch(m_sgpr):
        lq, ld = a.uid(name + "_pq"), a.uid(name + "_pd")
        slot_offset(m_sgpr, lq, ld)
        if "k1oob" in dbg: a(f"s_mov_b32 s{S_SO}, 0x7ffff000")
        a(f"buffer_load_dword v20, v{V_P13}, s[{SRD_W}:{SRD_W+3}], s{S_SO} offen")
        a(f"s_branch {ld}")
        a.label(lq)
        slot_offset_q(m_sgpr)
        a(f"s_cmp_ge_u32 s{m_sgpr}, s{S_NS}")
        a(f"s_cselect_b32 s{S_SO}, 0x7ffff000, s{S_SO}")
        a(f"buffer_load_dword v20, v{V_PQ}, s[{SRD_WQ}:{SRD_WQ+3}], s{S_SO} offen")
        a.label(ld)
    for m in range(PD):
        a(f"s_mov_b32 s{S_M}, {m}")
        prefetch(S_M)
    a("s_barrier")
    a(f"s_mov_b32 s{S_N}, 0")
    a.label(f"{name}_lpro")
    issue(S_N)
    a(f"s_add_u32 s{S_M}, s{S_N}, {PD}")
    prefetch(S_M)
    a(f"s_add_u32 s{S_N}, s{S_N}, 1")
    a(f"s_cmp_lt_u32 s{S_N}, 3")
    a(f"s_cbranch_scc1 {name}_lpro")
    a("s_waitcnt vmcnt(21)")
    a("s_barrier")
    a(f"s_mov_b32 s{S_N}, 1")
    a.label(f"{name}_lloop")
    a(f"s_add_u32 s{S_M}, s{S_N}, 1")
    a(f"s_cmp_ge_u32 s{S_M}, s{S_NS}")
    a(f"s_cbranch_scc1 {name}_llast")
    if not STAGE:
        a("s_waitcnt vmcnt(11)")
    else:
        w11, w15, wd = a.uid(name + "_w"), a.uid(name + "_w"), a.uid(name + "_w")
        a(f"s_and_b32 s{S_TMP}, s{S_N}, 3")
        a(f"s_cmp_eq_u32 s{S_TMP}, 1")
        a(f"s_cbranch_scc1 {w11}")
        a(f"s_cmp_eq_u32 s{S_TMP}, 3")
        a(f"s_cbranch_scc1 {w15}")
        a("s_waitcnt vmcnt(13)")
        a(f"s_branch {wd}")
        a.label(w15)
        a("s_waitcnt vmcnt(15)")
        a(f"s_branch {wd}")
        a.label(w11)
        a("s_waitcnt vmcnt(11)")
        a.label(wd)
    a("s_barrier")
    a(f"s_add_u32 s{S_M}, s{S_N}, 2")
    a(f"s_cmp_ge_u32 s{S_M}, s{S_NS}")
    a(f"s_cbranch_scc1 {name}_lnoi")
    issue(S_M)
    a(f"s_add_u32 s{S_M}, s{S_M}, {PD}")
    prefetch(S_M)
    a.label(f"{name}_lnoi")
    if STAGE: hand_over()
    a.label(f"{name}_lnext")
    a(f"s_add_u32 s{S_N}, s{S_N}, 1")
    a(f"s_branch {name}_lloop")
    a.label(f"{name}_llast")
    a("s_waitcnt vmcnt(0)")
    a("s_barrier")
    if STAGE: hand_over()
    if "now2" not in dbg:
        a("s_load_dwordx2 s[4:5], s[0:1], 48")
        a("s_load_dwordx2 s[6:7], s[0:1], 16")
        a(f"s_lshl_b32 s{S_TMP}, s2, 2")
        a(f"s_add_u32 s{S_TMP}, s{S_TMP}, s{S_WAVE}")
        a(f"s_mul_i32 s{S_TMP2}, s{S_TMP}, {41*128}")
        a(f"v_lshlrev_b32 v{V_T0}, 7, v{V_LANE}")
        a(f"v_cmp_gt_u32 vcc, 41, v{V_LANE}")
        a(f"v_mov_b32 v{V_T1}, 0x7fffffff")
        a("s_waitcnt lgkmcnt(0)")
        a(f"v_cndmask_b32 v21, v{V_T1}, v{V_T0}, vcc")
        make_srd(a, 28, 4, 5, 0, 4608 * 1152)
        a(f"buffer_load_dword v20, v21, s[28:31], s{S_TMP2} offen")
        a(f"s_mul_i32 s{S_TMP2}, s{S_TMP}, {6*128}")
        a(f"v_cmp_gt_u32 vcc, 6, v{V_LANE}")
        make_srd(a, 32, 6, 7, 0, 576 * 1152)
        a(f"v_cndmask_b32 v22, v{V_T1}, v{V_T0}, vcc")
        a(f"buffer_load_dword v20, v22, s[32:35], s{S_TMP2} offen")
    a.label(END)
    a("s_endpgm")
    return a.text() + kernel_descriptor(name, 256, 256)
```

```python
from lib import *
from k1 import f2h, perm_pi, emit_stamp_store

KB = 2 * 256 * 32
VROW = 512
VB = 20 * VROW
BUF = KB + VB
NBUF = 3
LDS_FLAG = NBUF * BUF
LDS_BYTES = LDS_FLAG + 64
OFF_SHIFT = 80.0
LAUNCH = ("k2_kernel", 256 + 16 * 3 * NSPLIT, 256, LDS_BYTES)

def publish(a, s_off):
    make_srd(a, 36, 12, 13, WS_F, SZ_F)
    a("v_mov_b32 v4, 1")
    a(f"v_and_b32 v5, 63, v0")
    a(f"v_cmp_eq_u32 vcc, 0, v5")
    a(f"v_mov_b32 v5, 0x7fffffff")
    a("s_nop 0")
    a(f"v_cndmask_b32 v5, v5, 0, vcc")
    a("s_waitcnt vmcnt(0)")
    a(f"buffer_store_dword v4, v5, s[36:39], s{s_off} offen sc0 sc1")

def gen_k2(name="k2_kernel", stamp=False, dbg=""):
    import kd, k3
    fused = not any(k in dbg for k in ("nofuse", "noattn", "nodown"))
    a = Asm()
    kernel_header(a, name)
    END = name + "_end"
    if "fst" in dbg:
        a("s_memtime s[60:61]")
        a("s_memrealtime s[72:73]")
    a("s_cmp_ge_u32 s2, 256")
    a(f"s_cbranch_scc1 {name}_down")
    if "noattn" not in dbg:
        attention_body(a, name, stamp, dbg)
    if fused:
        a("s_lshl_b32 s59, s15, 2")
        a("s_add_u32 s59, s59, s3")
        a("s_lshl_b32 s59, s59, 5")
        a("s_add_u32 s59, s59, s14")
        a("s_lshl_b32 s59, s59, 2")
        publish(a, 59)
        a("s_cmp_lt_u32 s2, 208")
        a(f"s_cbranch_scc1 {END}")
        a("s_add_u32 s58, s2, 32")
        a(f"s_branch {name}_final")
    else:
        a("s_endpgm")
    a.label(f"{name}_down")
    a(f"s_cmp_ge_u32 s2, {256 + 16 * 3 * NSPLIT}")
    a(f"s_cbranch_scc1 {END}")
    if "nodown" not in dbg:
        a("s_sub_u32 s58, s2, 256")
        kd.down_body(a, name + "_d", stamp, dbg, "s58")
    if fused:
        a("s_lshl_b32 s59, s14, 2")
        a("s_add_u32 s59, s59, s3")
        a("s_mul_i32 s59, s59, 3")
        a("s_add_u32 s59, s59, s15")
        a("s_lshl_b32 s59, s59, 3")
        a("s_add_u32 s59, s59, s40")
        a("s_lshl_b32 s59, s59, 2")
        a(f"s_add_u32 s59, s59, {FLAG_G}")
        publish(a, 59)
        a("s_barrier")
        a.label(f"{name}_final")
        k3.final_pre(a, name + "_f", "fst" in dbg, dbg, "s58", fused=True)
        k3.final_post(a, name + "_f", "fst" in dbg, dbg, fused=True)
    a.label(END)
    a("s_endpgm")
    return a.text() + kernel_descriptor(name, 240, 240)

def attention_body(a, name, stamp, dbg, wg="s2"):
    S_WAVE, S_HEAD, S_QB = 3, 14, 15
    SRD_Q, SRD_K, SRD_V, SRD_O = 16, 20, 24, 28
    S_TMP, S_TMP2, S_CH, S_MODE = 40, 41, 42, 43
    S_M0K, S_M0V, S_LB, S_LBN, S_KSRC, S_VSRC = 44, 45, 46, 47, 48, 49
    S_Q0, S_W0, S_LBX, S_I, S_NT = 50, 51, 52, 53, 54
    S_KW = 9
    S_ST = 60
    V_LANE, V_N, V_HI, V_PI, V_T0, V_T1 = 1, 2, 3, 4, 5, 6
    V_KA = 7
    V_VA = 10
    V_DK, V_DV = 18, 19
    V_MX = 22
    V_KC, V_VC = 24, 26
    Q1, Q2 = 36, 44
    KF1, KF2 = 52, 60
    VF = 68
    SS = 84
    PP = 116
    OO = 132
    CM = 164
    AD = 196
    S_U0, S_OO = 55, 59
    def stamp_at(i):
        if stamp: a(f"s_memtime s[{S_ST+2*i}:{S_ST+2*i+1}]")
    def put(l):
        if l.endswith(":"): a.label(l[:-1])
        else: a(l)
    if "win" in dbg: a("s_setprio 2")
    a("s_load_dwordx2 s[12:13], s[0:1], 72")
    stamp_at(0)
    if stamp: a(f"s_memrealtime s[{S_ST+12}:{S_ST+13}]")
    a("v_lshrrev_b32 v1, 6, v0")
    a(f"s_and_b32 s14, {wg}, 7")
    a(f"v_readfirstlane_b32 s{S_WAVE}, v1")
    a("s_lshl_b32 s14, s14, 2")
    a(f"s_bfe_u32 s15, {wg}, 0x20003")
    a(f"s_add_u32 s{S_HEAD}, s14, s15")
    a(f"s_lshr_b32 s{S_QB}, {wg}, 5")
    a(f"v_and_b32 v{V_LANE}, 63, v0")
    a(f"v_and_b32 v{V_N}, 31, v{V_LANE}")
    a(f"v_lshrrev_b32 v{V_HI}, 5, v{V_LANE}")
    perm_pi(a, V_PI, V_N, V_T0)
    a("s_waitcnt lgkmcnt(0)")
    a(f"s_mul_i32 s{S_TMP}, s{S_HEAD}, 18")
    a(f"s_lshr_b32 s{S_U0}, s{S_TMP}, 4")
    a(f"s_and_b32 s{S_OO}, s{S_TMP}, 15")
    a(f"s_lshl_b32 s{S_TMP}, s{S_U0}, 16")
    for srd, off in ((SRD_Q, WS_QK), (SRD_K, WS_QK + 36 * GRP)):
        a(f"s_add_u32 s{srd}, s12, {hex(off)}")
        a(f"s_addc_u32 s{srd+1}, s13, 0")
        a(f"s_add_u32 s{srd}, s{srd}, s{S_TMP}")
        a(f"s_addc_u32 s{srd+1}, s{srd+1}, 0")
        a(f"s_mov_b32 s{srd+2}, {2*GRP}")
        a(f"s_mov_b32 s{srd+3}, 0x20000")
    a(f"s_mul_i32 s{S_TMP}, s{S_HEAD}, {18*4096}")
    a(f"s_add_u32 s{SRD_V}, s12, {hex(WS_VT)}")
    a(f"s_addc_u32 s{SRD_V+1}, s13, 0")
    a(f"s_add_u32 s{SRD_V}, s{SRD_V}, s{S_TMP}")
    a(f"s_addc_u32 s{SRD_V+1}, s{SRD_V+1}, 0")
    a(f"s_mov_b32 s{SRD_V+2}, {18*4096}")
    a(f"s_mov_b32 s{SRD_V+3}, 0x20000")
    make_srd(a, SRD_O, 12, 13, WS_O, SZ_O)
    a(f"v_bfe_u32 v{V_T0}, v{V_LANE}, 4, 1")
    a(f"v_xor_b32 v{V_T0}, v{V_T0}, v{V_LANE}")
    a(f"v_lshlrev_b32 v{V_DK}, 4, v{V_T0}")
    a(f"v_xor_b32 v{V_T0}, v{V_N}, v{V_HI}")
    for i in range(3):
        a(f"s_add_u32 s{S_TMP}, s{S_WAVE}, {4*i}")
        a(f"s_lshl_b32 s{S_TMP}, s{S_TMP}, 1")
        a(f"s_and_b32 s{S_TMP2}, s{S_TMP}, 15")
        a(f"v_xor_b32 v{V_T1}, s{S_TMP2}, v{V_T0}")
        a(f"v_lshlrev_b32 v{V_T1}, 4, v{V_T1}")
        a(f"v_lshl_add_u32 v{V_T1}, v{V_HI}, 12, v{V_T1}")
        a(f"s_lshl_b32 s{S_TMP}, s{S_TMP}, 12")
        a(f"v_add_u32 v{V_DV+i}, s{S_TMP}, v{V_T1}")
    a(f"s_lshl_b32 s{S_M0K}, s{S_WAVE}, 12")
    a(f"s_lshr_b32 s{S_TMP}, s{S_WAVE}, 1")
    a(f"s_lshl_b32 s{S_TMP}, s{S_TMP}, 16")
    a(f"s_and_b32 s{S_KW}, s{S_WAVE}, 1")
    a(f"s_lshl_b32 s{S_KW}, s{S_KW}, 12")
    a(f"s_add_u32 s{S_KW}, s{S_KW}, s{S_TMP}")
    a(f"s_lshl_b32 s{S_M0V}, s{S_WAVE}, 10")
    a(f"s_add_u32 s{S_M0V}, s{S_M0V}, {KB}")
    a(f"s_cmp_eq_u32 s{S_WAVE}, 0")
    a(f"s_cselect_b32 s{S_W0}, 1, 0")
    def dma_groups():
        G = []
        for i in range(4):
            G.append([f"s_add_u32 m0, s{S_LBN}, s{S_M0K}" if i == 0 else "s_add_u32 m0, m0, 1024",
                      f"s_add_u32 s{S_TMP}, s{S_KSRC}, s{S_KW}" if i == 0 else f"s_add_u32 s{S_TMP}, s{S_TMP}, 1024",
                      f"buffer_load_dwordx4 v{V_DK}, s[{SRD_K}:{SRD_K+3}], s{S_TMP} offen lds"])
        for i in range(2):
            G.append([f"s_add_u32 m0, s{S_LBN}, s{S_M0V}" if i == 0 else "s_add_u32 m0, m0, 4096", "s_nop 0",
                      f"buffer_load_dwordx4 v{V_DV+i}, s[{SRD_V}:{SRD_V+3}], s{S_VSRC} offen lds"])
        lab = a.uid(name + "_w0")
        G.append([f"s_cmp_eq_u32 s{S_W0}, 0", f"s_cbranch_scc1 {lab}", "s_add_u32 m0, m0, 4096", "s_nop 0",
                  f"buffer_load_dwordx4 v{V_DV+2}, s[{SRD_V}:{SRD_V+3}], s{S_VSRC} offen lds", f"{lab}:"])
        return G
    def request(chunk_sgpr_or_imm, lds_base):
        if isinstance(chunk_sgpr_or_imm, int):
            a(f"s_mov_b32 s{S_KSRC}, {chunk_sgpr_or_imm * 8192}")
            a(f"s_mov_b32 s{S_VSRC}, {chunk_sgpr_or_imm * 512}")
        else:
            a(f"s_lshl_b32 s{S_KSRC}, {chunk_sgpr_or_imm}, 13")
            a(f"s_lshl_b32 s{S_VSRC}, {chunk_sgpr_or_imm}, 9")
        a(f"s_mov_b32 s{S_LBN}, {lds_base}")
        for g in dma_groups():
            for l in g: put(l)
    a(f"s_lshl_b32 s{S_Q0}, s{S_QB}, 8")
    a(f"s_lshl_b32 s{S_TMP2}, s{S_WAVE}, 6")
    a(f"s_add_u32 s{S_Q0}, s{S_Q0}, s{S_TMP2}")
    a(f"v_add_u32 v{V_T0}, s{S_Q0}, v{V_PI}")
    a(f"v_lshlrev_b32 v{V_T0}, 5, v{V_T0}")
    a(f"v_lshl_add_u32 v{V_T1}, v{V_HI}, 4, v{V_T0}")
    a(f"s_mov_b32 s{S_TMP}, {GRP}")
    for j in range(2):
        a(f"buffer_load_dwordx4 v[{Q1+4*j}:{Q1+4*j+3}], v{V_T1}, s[{SRD_Q}:{SRD_Q+3}], 0 offen offset:{j*1024}")
        a(f"buffer_load_dwordx4 v[{Q2+4*j}:{Q2+4*j+3}], v{V_T1}, s[{SRD_Q}:{SRD_Q+3}], s{S_TMP} offen offset:{j*1024}")
    request(0, 0)
    a(f"v_bfe_u32 v{V_T0}, v{V_PI}, 3, 1")
    a(f"v_xor_b32 v{V_T0}, v{V_T0}, v{V_HI}")
    a(f"v_lshlrev_b32 v{V_T0}, 4, v{V_T0}")
    a(f"v_lshl_add_u32 v{V_KA}, v{V_PI}, 5, v{V_T0}")
    a(f"v_and_b32 v{V_T1}, 15, v{V_PI}")
    a(f"v_xor_b32 v{V_T1}, v{V_T1}, v{V_HI}")
    a(f"v_cmp_gt_u32 vcc, 19, v{V_N}")
    a(f"v_mov_b32 v{V_T0}, 19")
    a("s_nop 0")
    a(f"v_cndmask_b32 v{V_T0}, v{V_T0}, v{V_PI}, vcc") if "nozrow" not in dbg else None
    if "nozrow" in dbg:
        a(f"v_subrev_u32 v{V_T0}, 16, v{V_PI}")
        a("s_nop 0")
        a(f"v_cndmask_b32 v{V_T0}, v{V_T0}, v{V_PI}, vcc")
    a(f"v_lshlrev_b32 v{V_T0}, 9, v{V_T0}")
    a(f"v_add_u32 v{V_T0}, {KB}, v{V_T0}")
    for c in range(8):
        kt, m = c >> 1, c & 1
        a(f"v_xor_b32 v{V_VA+c}, {4*kt + 2*m}, v{V_T1}")
        a(f"v_lshl_add_u32 v{V_VA+c}, v{V_VA+c}, 4, v{V_T0}")
    a(f"v_mov_b32 v{SS}, 0x3f803f80")
    a(f"v_cmp_gt_u32 vcc, 128, v0")
    a(f"v_lshlrev_b32 v{V_T0}, 2, v0")
    a("s_nop 0")
    a(f"v_cndmask_b32 v{SS}, 0, v{SS}, vcc")
    a(f"v_add_u32 v{V_T0}, {KB + 18*VROW}, v{V_T0}")
    for b in range(NBUF):
        a(f"ds_write_b32 v{V_T0}, v{SS} offset:{b*BUF}")
    a(f"s_mul_i32 s{S_TMP}, s{S_HEAD}, 3")
    a(f"v_add_u32 v{V_T0}, s{S_TMP}, v{V_HI}")
    a(f"v_lshlrev_b32 v{V_T1}, 4, v{V_N}")
    a(f"v_lshl_add_u32 v{AD}, v{V_T0}, 9, v{V_T1}")
    a(f"s_add_u32 s{S_TMP}, s{S_TMP}, 2")
    a(f"s_lshl_b32 s{S_TMP}, s{S_TMP}, 9")
    a(f"v_add_u32 v{AD+1}, s{S_TMP}, v{V_T1}")
    a(f"v_cmp_eq_u32 vcc, 0, v{V_HI}")
    a(f"v_mov_b32 v{SS+8}, 0x7fffffff")
    a("s_nop 0")
    a(f"v_cndmask_b32 v{AD+1}, v{SS+8}, v{AD+1}, vcc")
    def zero_state():
        for r in range(8):
            a(f"v_mov_b32 v{PP+8+r}, 0")
            a(f"v_mov_b32 v{VF+8+r}, 0")
    zero_state()
    a(f"s_mov_b32 s{S_MODE}, 0")
    a("s_waitcnt vmcnt(0) lgkmcnt(0)")
    a("s_barrier")
    stamp_at(1)
    a(f"v_lshlrev_b32 v{V_T0}, 3, v{V_HI}")
    a(f"s_add_u32 s{S_TMP}, s{S_OO}, 2")
    for p in range(4):
        a(f"v_add_u32 v{V_T1}, {2*p}, v{V_T0}")
        a(f"v_cmp_le_u32 vcc, s{S_OO}, v{V_T1}")
        a("s_nop 1")
        for j in range(2): a(f"v_cndmask_b32 v{Q1+4*j+p}, 0, v{Q1+4*j+p}, vcc")
        a(f"v_cmp_gt_u32 vcc, s{S_TMP}, v{V_T1}")
        a("s_nop 1")
        for j in range(2): a(f"v_cndmask_b32 v{Q2+4*j+p}, 0, v{Q2+4*j+p}, vcc")

    def set_k_addr(lb):
        return [f"v_add_u32 v{V_KC}, s{lb}, v{V_KA}"]
    def set_k_addr_imm(off):
        return [f"v_add_u32 v{V_KC}, {off}, v{V_KA}"]
    def set_v_addr(lb):
        return [f"v_add_u32 v{V_VC+c}, s{lb}, v{V_VA+c}" for c in range(8)]
    def k_reads(kt, s):
        return [f"ds_read_b128 v[{KF1+4*s}:{KF1+4*s+3}], v{V_KC} offset:{kt*1024}",
                f"ds_read_b128 v[{KF2+4*s}:{KF2+4*s+3}], v{V_KC} offset:{kt*1024+8192}"]
    def v_reads(kt, s):
        o = (kt >> 2) * 256
        return [f"ds_read_b128 v[{VF+8*s+4*m}:{VF+8*s+4*m+3}], v{V_VC+2*(kt&3)+m} offset:{o}" for m in range(2)]
    def qk(s, j, sb, shift=True):
        d = SS + 16 * sb
        c = f"v[{CM+16*j}:{CM+16*j+15}]" if shift else "0"
        return [f"v_mfma_f32_32x32x16_bf16 v[{d}:{d+15}], v[{KF1+4*s}:{KF1+4*s+3}], v[{Q1+4*j}:{Q1+4*j+3}], {c}",
                f"v_mfma_f32_32x32x16_bf16 v[{d}:{d+15}], v[{KF2+4*s}:{KF2+4*s+3}], v[{Q2+4*j}:{Q2+4*j+3}], v[{d}:{d+15}]"]
    def pv(s, j, pb):
        o = OO + 16 * j; p = PP + 8 * pb
        return [f"v_mfma_f32_32x32x16_bf16 v[{o}:{o+15}], v[{VF+8*s+4*m}:{VF+8*s+4*m+3}], v[{p+4*m}:{p+4*m+3}], v[{o}:{o+15}]" for m in range(2)]

    for l in set_k_addr_imm(0): a(l)
    for kt in range(2):
        for l in k_reads(kt, kt): a(l)
    bufs = [SS, SS + 16, OO, OO + 16]
    a("s_waitcnt lgkmcnt(2)")
    for kt in range(2):
        if kt == 1: a("s_waitcnt lgkmcnt(0)")
        for j in range(2):
            d = bufs[2 * kt + j]
            a(f"v_mfma_f32_32x32x16_bf16 v[{d}:{d+15}], v[{KF1+4*kt}:{KF1+4*kt+3}], v[{Q1+4*j}:{Q1+4*j+3}], 0")
            a(f"v_mfma_f32_32x32x16_bf16 v[{d}:{d+15}], v[{KF2+4*kt}:{KF2+4*kt+3}], v[{Q2+4*j}:{Q2+4*j+3}], v[{d}:{d+15}]")
    request(1, BUF)
    for kt in range(2):
        for j in range(2):
            d = bufs[2 * kt + j]
            if kt == 1 and j == 0: a("s_nop 7")
            for r in range(0, 16, 2):
                prev = f"v{V_MX+j}" if (kt or r) else f"v{d}"
                a(f"v_max3_f32 v{V_MX+j}, v{d+r}, v{d+r+1}, {prev}")
    a(f"s_branch {name}_maxdone")
    a.label(f"{name}_maxpass")
    for j in range(2):
        a(f"v_mov_b32 v{V_MX+j}, 0xff800000")
    a(f"s_mov_b32 s{S_CH}, 0")
    a(f"s_mov_b32 s{S_LB}, 0")
    a(f"s_mov_b32 s{S_NT}, 8")
    a.label(f"{name}_maxchunk")
    for l in set_k_addr(S_LB): a(l)
    a(f"s_mov_b32 s{S_I}, 0")
    a.label(f"{name}_maxtile")
    a(f"ds_read_b128 v[{KF1}:{KF1+3}], v{V_KC}")
    a(f"ds_read_b128 v[{KF2}:{KF2+3}], v{V_KC} offset:8192")
    a(f"v_add_u32 v{V_KC}, 1024, v{V_KC}")
    a("s_waitcnt lgkmcnt(0)")
    for j in range(2):
        for l in qk(0, j, j, shift=False): a(l)
    a("s_nop 7"); a("s_nop 7")
    for j in range(2):
        d = SS + 16 * j
        for r in range(0, 16, 2):
            a(f"v_max3_f32 v{V_MX+j}, v{d+r}, v{d+r+1}, v{V_MX+j}")
    a(f"s_add_u32 s{S_I}, s{S_I}, 1")
    a(f"s_cmp_lt_u32 s{S_I}, s{S_NT}")
    a(f"s_cbranch_scc1 {name}_maxtile")
    a(f"s_add_u32 s{S_CH}, s{S_CH}, 1")
    a("s_barrier")
    a(f"s_cmp_ge_u32 s{S_CH}, 8")
    a(f"s_cbranch_scc1 {name}_maxall")
    request(f"s{S_CH}", 0)
    a("s_waitcnt vmcnt(0)")
    a("s_barrier")
    a(f"s_branch {name}_maxchunk")
    a.label(f"{name}_maxall")
    zero_state()
    request(0, 0)
    request(1, BUF)
    a("s_waitcnt vmcnt(0)")
    a("s_barrier")
    a.label(f"{name}_maxdone")
    for r in range(32): a(f"v_mov_b32 v{OO+r}, 0")
    a(f"s_cmp_eq_u32 s{S_MODE}, 0")
    a(f"s_cselect_b32 s{S_TMP}, {f2h(OFF_SHIFT)}, 0")
    for j in range(2):
        m, t0 = V_MX + j, SS
        a(f"v_mov_b32 v{t0}, v{m}")
        a("s_nop 1")
        a(f"v_permlane32_swap_b32 v{m}, v{t0}")
        a("s_nop 1")
        a(f"v_max_f32 v{m}, v{m}, v{t0}")
        a(f"v_add_f32 v{m}, s{S_TMP}, v{m}")
        a(f"v_sub_f32 v{m}, 0, v{m}")
        for r in range(16): a(f"v_mov_b32 v{CM+16*j+r}, v{m}")
    stamp_at(2)

    a(f"s_mov_b32 s{S_CH}, 0")
    a(f"s_mov_b32 s{S_LB}, 0")
    a(f"s_mov_b32 s{S_LBX}, {BUF}")
    a(f"s_mov_b32 s{S_LBN}, {2*BUF}")
    a(f"s_mov_b32 s{S_KSRC}, {2*8192}")
    a(f"s_mov_b32 s{S_VSRC}, {2*512}")
    for l in set_k_addr(S_LB) + set_v_addr(S_LB): a(l)
    for l in k_reads(0, 0): a(l)
    a("s_waitcnt lgkmcnt(0)")
    for l in qk(0, 0, 0): a(l)
    a("s_nop 7")
    a("s_nop 3")
    def unit(mf, sb, extra):
        d = SS + 16 * sb; p = PP + 8 * sb
        ex = [f"v_exp_f32 v{d+i}, v{d+i}" for i in range(16)]
        cv = [f"v_cvt_pk_bf16_f32 v{p+i}, v{d+2*i}, v{d+2*i+1}" for i in range(8)]
        seq = [ex[0:4], ex[4:8] + cv[0:2], ex[8:12] + cv[2:4], ex[12:16] + cv[4:8]]
        if "grp" in dbg:
            seq = [ex[0:3], ex[3:6], ex[6:9], ex[9:16] + cv]
            if "win" in dbg:
                seq = [ex[0:3], ex[3:6], ex[6:9], ex[9:12] + ["s_setprio 0"] + ex[12:16] + cv[0:5] + ["s_setprio 2"] + cv[5:8]]
                if "winb" in dbg: seq[3] = ex[9:11] + ["s_setprio 0"] + ex[11:16] + cv[0:7] + ["s_setprio 2"] + cv[7:8]
                if "winc" in dbg: seq[3] = ex[9:13] + ["s_setprio 0"] + ex[13:16] + cv[0:3] + ["s_setprio 2"] + cv[3:8]
        def keep(l):
            if "a_nodma" in dbg and ("buffer_load" in l or "m0" in l): return False
            if "a_nords" in dbg and (l.startswith("ds_read") or l.startswith("s_waitcnt lgkm")): return False
            if "a_nobar" in dbg and (l == "s_barrier" or l.startswith("s_waitcnt vmcnt")): return False
            return True
        for i in range(4):
            for l in extra.get(("pre", i), []):
                if keep(l): put(l)
            a(mf[i])
            for l in extra.get(i, []):
                if keep(l): put(l)
            for l in seq[i]: a(l)
    if "win" in dbg: a("s_setprio 2")
    a.label(f"{name}_chunk")
    dg = dma_groups()
    skip = a.uid(name + "_nodma")
    for kt in range(8):
        s = kt & 1
        exA = {}
        if kt == 1:
            exA[("pre", 0)] = ["s_waitcnt vmcnt(0)", "s_barrier"]
        if kt < 7:
            exA[0] = k_reads(kt + 1, s ^ 1) + v_reads(kt, s)
        else:
            exA[0] = set_k_addr(S_LBX) + k_reads(0, s ^ 1) + v_reads(kt, s)
        if 2 <= kt <= 5:
            lab = a.uid(name + "_nd")
            pieces = dg[2*(kt-2)] + (dg[2*(kt-2)+1] if 2*(kt-2)+1 < len(dg) else [])
            exA[3] = [f"s_cmp_ge_u32 s{S_CH}, 6", f"s_cbranch_scc1 {lab}"] + pieces + [f"{lab}:"]
        q1 = qk(s, 1, 1); p1 = pv(s ^ 1, 1, 1)
        unit([q1[0], q1[1], p1[0], p1[1]], 0, exA)
        exB = {("pre", 0): ["s_waitcnt lgkmcnt(0)"]}
        if kt == 7:
            exB[0] = set_v_addr(S_LBX)
            exB[2] = [f"s_add_u32 s{S_CH}, s{S_CH}, 1", f"s_mov_b32 s{S_TMP2}, s{S_LB}", f"s_mov_b32 s{S_LB}, s{S_LBX}",
                      f"s_mov_b32 s{S_LBX}, s{S_LBN}", f"s_mov_b32 s{S_LBN}, s{S_TMP2}",
                      f"s_add_u32 s{S_KSRC}, s{S_KSRC}, 8192", f"s_add_u32 s{S_VSRC}, s{S_VSRC}, 512"]
        q0 = qk(s ^ 1, 0, 0); p0 = pv(s, 0, 0)
        unit([q0[0], q0[1], p0[0], p0[1]], 1, exB)
    a(f"s_cmp_lt_u32 s{S_CH}, 8")
    a(f"s_cbranch_scc1 {name}_chunk")
    for l in pv(1, 1, 1): a(l)
    if "win" in dbg: a("s_setprio 0")
    stamp_at(3)
    a("s_nop 7"); a("s_nop 7")
    RINV = SS
    ZZ = SS + 8
    a(f"v_mov_b32 v{ZZ}, 0")
    a(f"v_mov_b32 v{ZZ+1}, {f2h(2.0**100)}")
    a(f"v_mov_b32 v{ZZ+2}, 0x7fc00000")
    for j in range(2):
        o = OO + 16 * j
        l0, l1 = RINV + 2 * j, RINV + 2 * j + 1
        a(f"v_mov_b32 v{l0}, v{o+10}")
        a(f"v_mov_b32 v{l1}, v{o+10}")
        a("s_nop 1")
        a(f"v_permlane32_swap_b32 v{l0}, v{l1}")
        a("s_nop 1")
        a(f"v_cmp_nlt_f32 vcc, v{l0}, v{ZZ+1}")
        a(f"v_rcp_f32 v{l0}, v{l0}")
        a("s_nop 0")
        a(f"v_cndmask_b32 v{ZZ}, v{ZZ}, v{ZZ+2}, vcc")
        for r in range(10):
            a(f"v_mul_f32 v{o+r}, v{o+r}, v{l0}")
        for r in range(8):
            a(f"v_fma_f32 v{ZZ}, v{o+r}, 0, v{ZZ}")
    a(f"v_cmp_u_f32 vcc, v{ZZ}, v{ZZ}")
    a("s_nop 3")
    BAD = "vcc"
    a(f"s_cmp_lg_u64 vcc, 0")
    a(f"s_cselect_b32 s{S_TMP}, 1, 0")
    a(f"s_cmp_eq_u32 s{S_MODE}, 1")
    a(f"s_cselect_b32 s{S_TMP}, 0, s{S_TMP}")
    if "force1" in dbg:
        a(f"s_xor_b32 s{S_TMP}, s{S_MODE}, 1")
    a(f"v_mov_b32 v{V_T0}, s{S_TMP}")
    a(f"s_lshl_b32 s{S_TMP2}, s{S_WAVE}, 2")
    a(f"s_add_u32 s{S_TMP2}, s{S_TMP2}, {LDS_FLAG}")
    a(f"v_mov_b32 v{V_T1}, s{S_TMP2}")
    a(f"ds_write_b32 v{V_T1}, v{V_T0}")
    a("s_waitcnt lgkmcnt(0)")
    a("s_barrier")
    a(f"v_mov_b32 v{V_T1}, {LDS_FLAG}")
    a(f"ds_read_b128 v[{SS+12}:{SS+15}], v{V_T1}")
    a("s_waitcnt lgkmcnt(0)")
    a(f"v_or_b32 v{SS+12}, v{SS+12}, v{SS+13}")
    a(f"v_or3_b32 v{SS+12}, v{SS+12}, v{SS+14}, v{SS+15}")
    a("s_nop 0")
    a(f"v_readfirstlane_b32 s{S_TMP}, v{SS+12}")
    a("s_nop 3")
    a(f"s_cmp_eq_u32 s{S_TMP}, 0")
    a(f"s_cbranch_scc1 {name}_store")
    a(f"s_mov_b32 s{S_MODE}, 1")
    a("s_barrier")
    request(0, 0)
    a("s_waitcnt vmcnt(0)")
    a("s_barrier")
    a(f"s_branch {name}_maxpass")
    a.label(f"{name}_store")
    for j in range(2):
        o = OO + 16 * j
        a(f"s_lshr_b32 s{S_TMP}, s{S_Q0}, 5")
        a(f"s_add_u32 s{S_TMP}, s{S_TMP}, {j}")
        a(f"s_mul_i32 s{S_TMP}, s{S_TMP}, 49152")
        for w in range(5):
            a(f"v_cvt_pk_bf16_f32 v{o+w}, v{o+2*w}, v{o+2*w+1}")
        for w in range(5, 8): a(f"v_mov_b32 v{o+w}, 0")
        a(f"buffer_store_dwordx4 v[{o}:{o+3}], v{AD}, s[{SRD_O}:{SRD_O+3}], s{S_TMP} offen sc0 sc1")
        a(f"buffer_store_dwordx4 v[{o+4}:{o+7}], v{AD+1}, s[{SRD_O}:{SRD_O+3}], s{S_TMP} offen sc0 sc1")
    stamp_at(4)
    stamp_at(5)
    if stamp:
        a(f"s_memrealtime s[{S_ST+12+2}:{S_ST+12+3}]")
        emit_stamp_store(a, S_ST, 8)
```

```python
from lib import *
from k1 import f2h, LOG2E, perm_pi, dma_lane_offset128, emit_stamp_store

WO_BYTES = 576 * 128
LDS_BYTES = WO_BYTES + 1024
LAUNCH = ("k3_kernel", 288, 256, LDS_BYTES)

S_WAVE, S_TB, S_CT = 3, 14, 15
SRD_W, SRD_O, SRD_G, SRD_X, SRD_OUT, SRD_F = 16, 20, 24, 28, 32, 36
S_TMP, S_TMP2, S_OFF, S_CG, S_WK, S_TASK = 40, 41, 42, 43, 44, 45
S_ST = 60
V_LANE, V_N, V_HI, V_T0, V_T1, V_T2, V_DL, V_L16, V_XA, V_FA = 1, 2, 3, 4, 5, 6, 8, 9, 10, 11
OB = 16
ACC = 112
WR = 144
GB = 168
XB = 208
Y = 216
V_LB = 232
E, P = WR, OB + 16
NVGPR = 240

def gen_k3(name="k3_kernel", stamp=False, dbg=""):
    a = Asm()
    kernel_header(a, name)
    END = name + "_end"
    a("s_cmp_ge_u32 s2, 288")
    a(f"s_cbranch_scc1 {END}")
    final_pre(a, name, stamp, dbg, "s2", fused=False)
    final_post(a, name, stamp, dbg, fused=False)
    a.label(END)
    a("s_endpgm")
    return a.text() + kernel_descriptor(name, NVGPR, NVGPR)

def final_pre(a, name, stamp, dbg, task, fused):
    if fused and stamp: a("s_memtime s[62:63]")
    a(f"s_mov_b32 s{S_TASK}, {task}")
    a("s_load_dwordx2 s[4:5], s[0:1], 0")
    a("s_load_dwordx2 s[6:7], s[0:1], 16")
    a("s_load_dwordx2 s[8:9], s[0:1], 56")
    a("s_load_dwordx2 s[10:11], s[0:1], 72")
    if not fused:
        if stamp:
            a(f"s_memtime s[{S_ST}:{S_ST+1}]")
            a(f"s_memrealtime s[{S_ST+12}:{S_ST+13}]")
        a("v_lshrrev_b32 v1, 6, v0")
        a("s_nop 0")
        a(f"v_readfirstlane_b32 s{S_WAVE}, v1")
    a(f"s_and_b32 s{S_TMP}, s{S_TASK}, 7")
    a(f"s_lshr_b32 s{S_TMP2}, s{S_TASK}, 3")
    a(f"s_and_b32 s{S_TB}, s{S_TMP2}, 3")
    a(f"s_lshl_b32 s{S_TMP}, s{S_TMP}, 2")
    a(f"s_add_u32 s{S_TB}, s{S_TB}, s{S_TMP}")
    a(f"s_lshr_b32 s{S_CG}, s{S_TMP2}, 2")
    a(f"s_lshl_b32 s{S_TB}, s{S_TB}, 1")
    a(f"s_lshr_b32 s{S_TMP}, s{S_WAVE}, 1")
    a(f"s_add_u32 s{S_TB}, s{S_TB}, s{S_TMP}")
    a(f"s_and_b32 s{S_WK}, s{S_WAVE}, 1")
    a(f"s_lshl_b32 s{S_CT}, s{S_CG}, 1")
    a(f"s_add_u32 s{S_CT}, s{S_CT}, s{S_WK}")
    a(f"v_and_b32 v{V_LANE}, 63, v0")
    a("s_waitcnt lgkmcnt(0)")
    make_srd(a, SRD_W, 6, 7, 0, 576 * 1152)
    make_srd(a, SRD_O, 10, 11, WS_O, SZ_O)
    make_srd(a, SRD_G, 10, 11, WS_G, NSPLIT * SZ_G1)
    make_srd(a, SRD_X, 4, 5, 0, 2048 * 1152)
    make_srd(a, SRD_OUT, 8, 9, 0, 2048 * 1152)
    make_srd(a, SRD_F, 10, 11, WS_F, SZ_F)
    a(f"v_lshlrev_b32 v{V_L16}, 4, v{V_LANE}")
    a(f"s_movk_i32 s{S_TMP}, 1152")
    dma_lane_offset128(a, V_DL, V_LANE, S_TMP, V_T0, V_T1)
    a(f"s_mul_i32 s{S_OFF}, s{S_WAVE}, {18*8*1152}")
    a(f"s_lshl_b32 s{S_TMP}, s{S_CG}, 7")
    a(f"s_add_u32 s{S_OFF}, s{S_OFF}, s{S_TMP}")
    a(f"s_mul_i32 s{S_TMP}, s{S_WAVE}, {18*1024}")
    a(f"s_mov_b32 m0, s{S_TMP}")
    for j in range(18):
        a("s_nop 0")
        a(f"buffer_load_dwordx4 v{V_DL}, s[{SRD_W}:{SRD_W+3}], s{S_OFF} offen lds")
        if j < 17:
            a(f"s_add_u32 s{S_OFF}, s{S_OFF}, {8*1152}")
            a("s_add_u32 m0, m0, 1024")
    for r in range(4): a(f"v_mov_b32 v{Y+r}, 0")
    a(f"v_add_u32 v{V_T0}, {WO_BYTES}, v{V_L16}")
    a(f"ds_write_b128 v{V_T0}, v[{Y}:{Y+3}]")
    a(f"v_and_b32 v{V_N}, 31, v{V_LANE}")
    a(f"v_lshrrev_b32 v{V_HI}, 5, v{V_LANE}")
    perm_pi(a, V_T0, V_N, V_T1)
    a(f"s_lshl_b32 s{S_TMP}, s{S_TB}, 5")
    a(f"v_add_u32 v{V_T0}, s{S_TMP}, v{V_T0}")
    a(f"s_movk_i32 s{S_TMP}, 1152")
    a(f"v_mul_lo_u32 v{V_XA}, v{V_T0}, s{S_TMP}")
    a(f"v_lshl_add_u32 v{V_XA}, v{V_HI}, 4, v{V_XA}")
    a(f"s_lshl_b32 s{S_TMP}, s{S_CT}, 6")
    a(f"v_add_u32 v{V_XA}, s{S_TMP}, v{V_XA}")
    a(f"buffer_load_dwordx4 v[{XB}:{XB+3}], v{V_XA}, s[{SRD_X}:{SRD_X+3}], 0 offen")
    a(f"buffer_load_dwordx4 v[{XB+4}:{XB+7}], v{V_XA}, s[{SRD_X}:{SRD_X+3}], 0 offen offset:32")
    a(f"v_bfe_u32 v{V_T2}, v{V_LANE}, 4, 1")
    a(f"v_lshlrev_b32 v{V_T2}, 5, v{V_T2}")
    a(f"v_and_b32 v{V_T0}, 1, v{V_LANE}")
    a(f"v_lshl_add_u32 v{V_T2}, v{V_T0}, 4, v{V_T2}")
    a(f"v_bfe_u32 v{V_T0}, v{V_LANE}, 1, 1")
    a(f"v_lshl_add_u32 v{V_T2}, v{V_T0}, 3, v{V_T2}")
    a(f"s_mul_i32 s{S_TMP}, s{S_WK}, {8*36*128}")
    a(f"v_add_u32 v{V_T2}, s{S_TMP}, v{V_T2}")
    for j, (r0, r1) in enumerate(((0, 8), (16, 18), (26, 34))):
        a(f"v_mul_u32_u24 v{V_T0}, {r1 - r0}, v{V_HI}")
        a(f"v_bfe_u32 v{V_T1}, v{V_LANE}, 2, 2")
        a(f"v_add3_u32 v{V_T0}, v{V_T0}, v{V_T1}, {r0}")
        a(f"v_bfe_u32 v{V_T1}, v{V_T0}, 1, 1")
        a(f"v_lshl_add_u32 v{V_T1}, v{V_T1}, 6, v{V_T2}")
        a(f"v_lshl_add_u32 v{V_LB+2*j}, v{V_T0}, 7, v{V_T1}")
        a(f"v_xor_b32 v{V_LB+2*j+1}, 64, v{V_LB+2*j}")
    return 20

def final_post(a, name, stamp, dbg, fused, D=6):
    LDF = " sc1" if fused else ""
    def stamp_at(i):
        if stamp: a(f"s_memtime s[{S_ST+2*i}:{S_ST+2*i+1}]")
    def wait_flags(lane_mask_imm, addr_setup):
        lp, ld = a.uid(name + "_poll"), a.uid(name + "_polled")
        a(f"s_cmp_eq_u32 s{S_WAVE}, 0")
        a(f"s_cbranch_scc0 {ld}")
        addr_setup()
        a(f"s_mov_b32 s46, {hex(lane_mask_imm & 0xffffffff)}")
        a(f"s_mov_b32 s47, {hex(lane_mask_imm >> 32)}")
        a(f"v_mov_b32 v{V_T1}, 0x7fffffff")
        a(f"v_cndmask_b32 v{V_FA}, v{V_T1}, v{V_FA}, s[46:47]")
        a.label(lp)
        a(f"buffer_load_dword v{V_T0}, v{V_FA}, s[{SRD_F}:{SRD_F+3}], 0 offen sc1")
        a("s_waitcnt vmcnt(0)")
        a(f"v_cmp_ne_u32 vcc, 0, v{V_T0}")
        a("s_nop 3")
        a("s_and_b64 vcc, vcc, s[46:47]")
        a("s_cmp_eq_u64 vcc, s[46:47]")
        a(f"s_cbranch_scc1 {ld}")
        a("s_sleep 2")
        a(f"s_branch {lp}")
        a.label(ld)
        a("s_barrier")
    if fused:
        def g_addr():
            a(f"s_and_b32 s{S_TMP}, s{S_TB}, -2")
            a(f"s_mul_i32 s{S_TMP}, s{S_TMP}, 3")
            a(f"s_mul_i32 s{S_TMP2}, s{S_CG}, 43")
            a(f"s_lshr_b32 s{S_TMP2}, s{S_TMP2}, 7")
            a(f"s_add_u32 s{S_TMP}, s{S_TMP}, s{S_TMP2}")
            a(f"s_lshl_b32 s{S_TMP}, s{S_TMP}, 5")
            a(f"s_add_u32 s{S_TMP}, s{S_TMP}, {FLAG_G}")
            a(f"v_and_b32 v{V_FA}, 7, v{V_LANE}")
            a(f"v_lshrrev_b32 v{V_T0}, 3, v{V_LANE}")
            a(f"v_mul_u32_u24 v{V_T0}, 24, v{V_T0}")
            a(f"v_add_u32 v{V_FA}, v{V_FA}, v{V_T0}")
            a(f"v_lshl_add_u32 v{V_FA}, v{V_FA}, 2, s{S_TMP}")
        wait_flags(((1 << NSPLIT) - 1) * 0x101, g_addr)
        stamp_at(2)
    a(f"s_mul_i32 s{S_TMP}, s{S_TB}, 18")
    a(f"s_add_u32 s{S_TMP}, s{S_TMP}, s{S_CT}")
    a(f"s_lshl_b32 s{S_OFF}, s{S_TMP}, 11")
    for s in range(NSPLIT):
        for q in range(2):
            a(f"buffer_load_dwordx4 v[{GB+8*s+4*q}:{GB+8*s+4*q+3}], v{V_L16}, s[{SRD_G}:{SRD_G+3}], s{S_OFF} offen offset:{q*1024}{LDF}")
        if s < NSPLIT - 1: a(f"s_add_u32 s{S_OFF}, s{S_OFF}, {SZ_G1}")
    a("s_waitcnt vmcnt(0) lgkmcnt(0)")
    for s in range(NSPLIT):
        for q in range(8):
            g = GB + 8 * s + q
            dst = Y if s == 0 else E
            a(f"v_lshlrev_b32 v{dst+2*q}, 16, v{g}")
            a(f"v_and_b32 v{dst+2*q+1}, 0xffff0000, v{g}")
        if s > 0:
            for r in range(16): a(f"v_add_f32 v{Y+r}, v{Y+r}, v{E+r}")
    C2 = 1.0 / (LOG2E * LOG2E)
    a(f"s_mov_b32 s{S_TMP}, {f2h(C2)}")
    a(f"s_mov_b32 s{S_TMP2}, {f2h(-LOG2E)}")
    SG = GB
    for r in range(16):
        a(f"v_mul_f32 v{Y+r}, s{S_TMP}, v{Y+r}")
        a(f"v_mul_f32 v{SG+r}, s{S_TMP2}, v{Y+r}")
    for r in range(16): a(f"v_exp_f32 v{SG+r}, v{SG+r}")
    for r in range(16): a(f"v_add_f32 v{SG+r}, 1.0, v{SG+r}")
    for r in range(16): a(f"v_rcp_f32 v{SG+r}, v{SG+r}")
    XF = GB + 16
    for r in range(16):
        d = r // 2
        if r % 2 == 0: a(f"v_lshlrev_b32 v{XF+r}, 16, v{XB+d}")
        else: a(f"v_and_b32 v{XF+r}, 0xffff0000, v{XB+d}")
    for r in range(16): a(f"v_mul_f32 v{Y+r}, v{Y+r}, v{SG+r}")
    if fused:
        def a_addr():
            a(f"s_lshr_b32 s{S_TMP}, s{S_TB}, 1")
            a(f"s_lshl_b32 s{S_TMP}, s{S_TMP}, 7")
            a(f"v_lshl_add_u32 v{V_FA}, v{V_LANE}, 2, s{S_TMP}")
        wait_flags(0xffffffff, a_addr)
        stamp_at(3)
    else:
        a("s_barrier")
        stamp_at(1)
    NUP = 8
    a(f"s_mul_i32 s{S_TMP2}, s{S_TB}, 49152")
    a(f"s_mul_i32 s{S_TMP}, s{S_WK}, 24576")
    a(f"s_add_u32 s{S_TMP2}, s{S_TMP2}, s{S_TMP}")
    def o_load(ks):
        L = []
        if ks % 4 == 0 and ks > 0: L.append(f"s_add_u32 s{S_TMP2}, s{S_TMP2}, 4096")
        L.append(f"buffer_load_dwordx4 v[{OB+4*ks}:{OB+4*ks+3}], v{V_L16}, s[{SRD_O}:{SRD_O+3}], s{S_TMP2} offen offset:{(ks%4)*1024}{LDF}")
        return L
    for ks in range(NUP):
        for l in o_load(ks): a(l)
    def reads(i):
        r = WR + 4 * (i % D)
        k, t = i >> 1, i & 1
        m, j = divmod(k, 3)
        return [f"ds_read_b64_tr_b16 v[{r}:{r+1}], v{V_LB+2*j+t} offset:{m*4608}",
                f"ds_read_b64_tr_b16 v[{r+2}:{r+3}], v{V_LB+2*j+t} offset:{m*4608+512}"]
    for i in range(D):
        for l in reads(i): a(l)
    for i in range(48):
        k, t = i >> 1, i & 1
        if t == 0: a(f"s_waitcnt vmcnt({min(24, NUP + k) - (k + 1)})")
        if i % 2 == 0: a(f"s_waitcnt lgkmcnt({2 * (min(i + D - 1, 47) - (i + 1))})")
        r = WR + 4 * (i % D); acc = ACC + 16 * t
        c = "0" if k == 0 else f"v[{acc}:{acc+15}]"
        a(f"v_mfma_f32_32x32x16_bf16 v[{acc}:{acc+15}], v[{r}:{r+3}], v[{OB+4*k}:{OB+4*k+3}], {c}")
        if i + D < 48:
            for l in reads(i + D): a(l)
        if t == 0 and k + NUP < 24:
            for l in o_load(k + NUP): a(l)
    if fused: stamp_at(4)
    else: stamp_at(2)
    a("s_barrier")
    a(f"s_lshl_b32 s{S_TMP}, s{S_WAVE}, 12")
    a(f"v_add_u32 v{V_T0}, s{S_TMP}, v{V_L16}")
    lk, lj = a.uid(name + "_k"), a.uid(name + "_j")
    a("s_nop 7")
    a(f"s_cmp_eq_u32 s{S_WK}, 0")
    a(f"s_cbranch_scc1 {lk}")
    for q in range(4): a(f"ds_write_b128 v{V_T0}, v[{ACC+4*q}:{ACC+4*q+3}] offset:{q*1024}")
    a("s_waitcnt lgkmcnt(0)")
    for r in range(16): a(f"v_mov_b32 v{ACC+r}, v{ACC+16+r}")
    a(f"s_branch {lj}")
    a.label(lk)
    for q in range(4): a(f"ds_write_b128 v{V_T0}, v[{ACC+16+4*q}:{ACC+16+4*q+3}] offset:{q*1024}")
    a.label(lj)
    a("s_waitcnt lgkmcnt(0)")
    a("s_barrier")
    a(f"s_xor_b32 s{S_TMP}, s{S_WAVE}, 1")
    a(f"s_lshl_b32 s{S_TMP}, s{S_TMP}, 12")
    a(f"v_add_u32 v{V_T0}, s{S_TMP}, v{V_L16}")
    for q in range(4): a(f"ds_read_b128 v[{P+4*q}:{P+4*q+3}], v{V_T0} offset:{q*1024}")
    a("s_waitcnt lgkmcnt(0)")
    for r in range(16): a(f"v_add_f32 v{ACC+r}, v{ACC+r}, v{P+r}")
    if not fused: stamp_at(3)
    for r in range(16): a(f"v_fma_f32 v{Y+r}, v{Y+r}, v{ACC+r}, v{XF+r}")
    for r in range(8): a(f"v_cvt_pk_bf16_f32 v{Y+r}, v{Y+2*r}, v{Y+2*r+1}")
    OST = " sc0 sc1" if "owt" in dbg else (" nt" if "ont" in dbg else "")
    a(f"buffer_store_dwordx4 v[{Y}:{Y+3}], v{V_XA}, s[{SRD_OUT}:{SRD_OUT+3}], 0 offen{OST}")
    a(f"buffer_store_dwordx4 v[{Y+4}:{Y+7}], v{V_XA}, s[{SRD_OUT}:{SRD_OUT+3}], 0 offen offset:32{OST}")
    if stamp:
        if fused:
            stamp_at(5)
            a("s_mov_b32 s12, s10")
            a("s_mov_b32 s13, s11")
        else:
            stamp_at(4); stamp_at(5)
        a(f"s_memrealtime s[{S_ST+14}:{S_ST+15}]")
        emit_stamp_store(a, S_ST, 8)
```

```python
from lib import *
import struct

SLOT = 36864
REG = 18432
STG = 4 * SLOT
LDS_BYTES = STG + 16384
LOG2E = 1.4426950408889634

def f2h(x):
    return hex(struct.unpack("<I", struct.pack("<f", x))[0])

def perm_pi(a, dst, src, t0):
    a(f"v_and_b32 v{dst}, 0x13, v{src}")
    a(f"v_and_b32 v{t0}, 4, v{src}")
    a(f"v_lshl_or_b32 v{dst}, v{t0}, 1, v{dst}")
    a(f"v_and_b32 v{t0}, 8, v{src}")
    a(f"v_lshrrev_b32 v{t0}, 1, v{t0}")
    a(f"v_or_b32 v{dst}, v{dst}, v{t0}")

def tr_lane_base128(a, dst, lane, t0, t1):
    a(f"v_lshrrev_b32 v{t0}, 5, v{lane}")
    a(f"v_lshlrev_b32 v{t0}, 3, v{t0}")
    a(f"v_bfe_u32 v{t1}, v{lane}, 2, 2")
    a(f"v_add_u32 v{t0}, v{t0}, v{t1}")
    a(f"v_lshlrev_b32 v{dst}, 7, v{t0}")
    a(f"v_bfe_u32 v{t0}, v{lane}, 3, 1")
    a(f"v_lshl_add_u32 v{dst}, v{t0}, 6, v{dst}")
    a(f"v_bfe_u32 v{t0}, v{lane}, 4, 1")
    a(f"v_lshl_add_u32 v{dst}, v{t0}, 5, v{dst}")
    a(f"v_and_b32 v{t0}, 1, v{lane}")
    a(f"v_lshl_add_u32 v{dst}, v{t0}, 4, v{dst}")
    a(f"v_bfe_u32 v{t0}, v{lane}, 1, 1")
    a(f"v_lshl_add_u32 v{dst}, v{t0}, 3, v{dst}")

def dma_lane_offset128(a, dst, lane, stride_sgpr, t0, t1):
    a(f"v_lshrrev_b32 v{t0}, 3, v{lane}")
    a(f"v_mul_lo_u32 v{dst}, v{t0}, s{stride_sgpr}")
    a(f"v_bfe_u32 v{t0}, v{lane}, 4, 1")
    a(f"v_lshlrev_b32 v{t0}, 2, v{t0}")
    a(f"v_and_b32 v{t1}, 7, v{lane}")
    a(f"v_xor_b32 v{t0}, v{t0}, v{t1}")
    a(f"v_lshl_add_u32 v{dst}, v{t0}, 4, v{dst}")

def stage_rows_via_lds(a, XB, srd, s_rowbyte0, rowbytes, s_lds, v_lane, v_pi, v_hi, tmpv, s_tmp, nchunks, after_issue, per_chunk, npf):
    pass

def x_stage(a, chunks, s_tbw, s_t0, srd, v_lane, s_soff, s_lds, s_cnt):
    V_DA, V_DB = 6, 7
    a(f"v_lshrrev_b32 v{V_DA}, 3, v{v_lane}")
    a(f"s_movk_i32 s{s_soff}, 1152")
    a(f"v_mul_lo_u32 v{V_DA}, v{V_DA}, s{s_soff}")
    a(f"v_lshrrev_b32 v8, 4, v{v_lane}")
    a(f"v_and_b32 v9, 7, v{v_lane}")
    a(f"v_xor_b32 v8, v8, v9")
    a(f"v_xor_b32 v9, 4, v8")
    a(f"v_lshl_add_u32 v{V_DB}, v9, 4, v{V_DA}")
    a(f"v_lshl_add_u32 v{V_DA}, v8, 4, v{V_DA}")
    a(f"s_mul_i32 s{s_soff}, s{s_t0}, 1152")
    a(f"s_mul_i32 s{s_lds}, s{s_tbw}, {SLOT}")
    for c in chunks:
        for i in range(4):
            if i == 0: a(f"s_add_u32 m0, s{s_lds}, {c*4096}")
            else: a(f"s_add_u32 m0, m0, 1024")
            a(f"s_add_u32 s{s_cnt}, s{s_soff}, {c*128 + i*8*1152}")
            a(f"buffer_load_dwordx4 v{V_DA if i % 2 == 0 else V_DB}, s[{srd}:{srd+3}], s{s_cnt} offen lds")

def emit_stamp_store(a, s0, n):
    a("s_waitcnt lgkmcnt(0)")
    a("s_lshl_b32 s46, s2, 3")
    a("s_add_u32 s46, s46, s3")
    a("s_lshl_b32 s46, s46, 6")
    a(f"s_add_u32 s56, s12, {hex(WS_STAMP)}")
    a("s_addc_u32 s57, s13, 0")
    a("s_add_u32 s56, s56, s46")
    a("s_addc_u32 s57, s57, 0")
    a("v_mov_b32 v1, 0")
    for i in range(n):
        a(f"v_mov_b32 v2, s{s0+2*i}")
        a(f"v_mov_b32 v3, s{s0+2*i+1}")
        a(f"global_store_dwordx2 v1, v[2:3], s[56:57] offset:{8*i}")
        a("s_nop 1")
    a("s_waitcnt vmcnt(0)")

def gen_k1(name="k1_kernel", D=6, stamp=False, dbg="", PD=6):
    R = 8
    STAGE = "stage" in dbg
    STF = " sc0 sc1"
    for k, v in (("hplain", ""), ("hsc1", " sc1"), ("hsc0", " sc0"), ("hnt", " nt"), ("hntsc1", " sc1 nt")):
        if k + "," in dbg + ",": STF = v
    a = Asm()
    kernel_header(a, name)
    END = name + "_end"
    S_WAVE, S_G, S_RB = 3, 14, 15
    SRD_X, SRD_W, SRD_WQ, SRD_H, SRD_QK, SRD_VT = 16, 20, 24, 28, 32, 36
    S_NQUAD, S_Q0, S_NDT, S_DT0 = 40, 41, 42, 43
    S_SOFF, S_LDS, S_CNT, S_TMP, S_TMP2 = 44, 45, 46, 47, 48
    S_HOFF, S_TILE, S_EPMUL, S_EPOFF = 49, 50, 51, 52
    S_ROT = 54
    SRD_EP = 56
    S_ST = 60
    V_LANE, V_N, V_HI, V_T0, V_T1 = 1, 2, 3, 4, 5
    V_LB, V_RA = 6, 8
    V_HADDR, V_QKADDR, V_VTADDR, V_EPADDR, V_PI = 11, 12, 13, 14, 15
    XB, ACC, WR = 16, 160, 224
    TMP = WR + 4 * D
    assert TMP + 8 <= 256
    def stamp_at(i):
        if stamp: a(f"s_memtime s[{S_ST+2*i}:{S_ST+2*i+1}]")
    a("s_cmp_ge_u32 s2, 256")
    a(f"s_cbranch_scc1 {END}")
    a("s_load_dwordx4 s[4:7], s[0:1], 0")
    a("s_load_dwordx4 s[8:11], s[0:1], 32")
    a("s_load_dwordx2 s[12:13], s[0:1], 72")
    if "nocode" not in dbg:
        lab = a.uid(name + "_pc")
        a("s_getpc_b64 s[34:35]")
        a.label(lab)
        a(f"s_sub_u32 s34, s34, {lab}-{name}")
        a("s_subb_u32 s35, s35, 0")
        a("s_lshr_b32 s36, s2, 3")
        a("v_lshrrev_b32 v20, 6, v0")
        a("v_lshl_add_u32 v20, s36, 3, v20")
        a("v_and_b32 v21, 1, v0")
        a("v_lshl_add_u32 v20, v20, 1, v21")
        a("v_lshlrev_b32 v20, 7, v20")
        a(f"s_mov_b32 s36, k2_kernel_end-{name}")
        a("v_min_u32 v20, s36, v20")
        a("global_load_dword v21, v20, s[34:35]")
    stamp_at(0)
    if stamp: a(f"s_memrealtime s[{S_ST+12}:{S_ST+13}]")
    a("v_lshrrev_b32 v1, 6, v0")
    a("s_and_b32 s14, s2, 7")
    a(f"v_readfirstlane_b32 s{S_WAVE}, v1")
    a("s_lshr_b32 s15, s2, 3")
    a(f"s_lshr_b32 s{S_TMP}, s14, 1")
    a(f"s_lshl_b32 s{S_TMP}, s{S_TMP}, 2")
    a(f"s_lshr_b32 s{S_TMP2}, s15, 3")
    a(f"s_add_u32 s{S_TMP}, s{S_TMP}, s{S_TMP2}")
    a("s_and_b32 s14, s14, 1")
    a("s_lshl_b32 s14, s14, 3")
    a("s_and_b32 s15, s15, 7")
    a(f"s_add_u32 s{S_RB}, s14, s15")
    a(f"s_mov_b32 s{S_G}, s{S_TMP}")
    a(f"v_and_b32 v{V_LANE}, 63, v0")
    a(f"s_lshr_b32 s{S_TMP}, s{S_G}, 1")
    a(f"s_and_b32 s{S_TMP2}, s{S_G}, 1")
    a(f"s_sub_u32 s{S_NQUAD}, 5, s{S_TMP2}")
    a(f"s_mul_i32 s{S_Q0}, s{S_TMP}, 9")
    a(f"s_mul_i32 s{S_CNT}, s{S_TMP2}, 5")
    a(f"s_add_u32 s{S_Q0}, s{S_Q0}, s{S_CNT}")
    a(f"s_min_u32 s{S_CNT}, s{S_TMP}, 3")
    a(f"s_mul_i32 s{S_DT0}, s{S_TMP}, 3")
    a(f"s_add_u32 s{S_DT0}, s{S_DT0}, s{S_CNT}")
    a(f"s_add_u32 s{S_DT0}, s{S_DT0}, s{S_TMP2}")
    a(f"s_cmp_lt_u32 s{S_TMP}, 3")
    a(f"s_cselect_b32 s{S_NDT}, 3, 2")
    a(f"s_cmp_eq_u32 s{S_TMP2}, 0")
    a(f"s_cselect_b32 s{S_NDT}, 1, s{S_NDT}")
    a("s_waitcnt lgkmcnt(0)")
    if "pst" in dbg: stamp_at(1)
    a(f"s_cmp_ge_u32 s{S_WAVE}, 4")
    a(f"s_cbranch_scc1 {name}_loader")

    if "cprio" in dbg: a("s_setprio 3")
    make_srd(a, SRD_X, 4, 5, 0, 2048 * 1152)
    a(f"v_and_b32 v{V_N}, 31, v{V_LANE}")
    a(f"v_lshrrev_b32 v{V_HI}, 5, v{V_LANE}")
    perm_pi(a, V_PI, V_N, V_T1)
    a(f"s_lshl_b32 s{S_TMP}, s{S_RB}, 2")
    a(f"s_add_u32 s{S_TMP}, s{S_TMP}, s{S_WAVE}")
    a(f"s_lshl_b32 s{S_TMP2}, s{S_TMP}, 5")
    if "lat" in dbg:
        a(f"v_lshlrev_b32 v20, 7, v{V_LANE}")
        a(f"s_mul_i32 s{S_CNT}, s{S_TMP2}, 1152")
        a(f"buffer_load_dword v21, v20, s[{SRD_X}:{SRD_X+3}], s{S_CNT} offen")
        a("s_waitcnt vmcnt(0)")
        stamp_at(2)
        a(f"s_add_u32 s{S_CNT}, s{S_CNT}, 8192")
        a(f"buffer_load_dword v21, v20, s[{SRD_X}:{SRD_X+3}], s{S_CNT} offen")
        a("s_waitcnt vmcnt(0)")
        stamp_at(3)
    STARTS = (0, 2, 4, 7)
    a(f"s_and_b32 s{S_ROT}, s{S_G}, 3")
    for j, c0 in enumerate(STARTS):
        lab = f"{name}_xs{j}"
        if j > 0: a.label(lab)
        if j < 3:
            a(f"s_cmp_eq_u32 s{S_ROT}, {j}")
            a(f"s_cbranch_scc0 {name}_xs{j+1}")
        x_stage(a, [(c0 + i) % 9 for i in range(9)], S_WAVE, S_TMP2, SRD_X, V_LANE, S_SOFF, S_LDS, S_CNT)
        if j < 3: a(f"s_branch {name}_xsd")
    a.label(f"{name}_xsd")
    stamp_at(4 if "lat" in dbg else (2 if "pst" in dbg else 1))
    make_srd(a, SRD_H, 12, 13, WS_H, SZ_H)
    make_srd(a, SRD_QK, 12, 13, WS_QK, SZ_QK)
    make_srd(a, SRD_VT, 12, 13, WS_VT, SZ_VT)
    a(f"v_add_u32 v{V_T1}, s{S_TMP2}, v{V_PI}")
    a(f"v_lshlrev_b32 v{V_QKADDR}, 5, v{V_T1}")
    a(f"v_lshl_add_u32 v{V_QKADDR}, v{V_HI}, 4, v{V_QKADDR}")
    a(f"v_lshlrev_b32 v{V_VTADDR}, 12, v{V_PI}")
    a(f"v_lshl_add_u32 v{V_VTADDR}, v{V_HI}, 4, v{V_VTADDR}")
    a(f"s_lshl_b32 s{S_SOFF}, s{S_TMP2}, 1")
    a(f"v_add_u32 v{V_VTADDR}, s{S_SOFF}, v{V_VTADDR}")
    a(f"v_lshlrev_b32 v{V_HADDR}, 4, v{V_LANE}")
    a(f"s_mul_i32 s{S_HOFF}, s{S_TMP}, {288*1024}")
    a(f"s_lshl_b32 s{S_SOFF}, s{S_Q0}, 12")
    a(f"s_add_u32 s{S_HOFF}, s{S_HOFF}, s{S_SOFF}")
    if STAGE:
        a(f"s_lshl_b32 s{S_SOFF}, s{S_NQUAD}, 12")
        a(f"s_add_u32 s{S_HOFF}, s{S_HOFF}, s{S_SOFF}")
        a(f"s_sub_u32 s{S_HOFF}, s{S_HOFF}, 2048")
    V_STG = 10
    a(f"s_lshl_b32 s{S_SOFF}, s{S_WAVE}, 11")
    a(f"s_add_u32 s{S_SOFF}, s{S_SOFF}, {STG}")
    a(f"v_lshl_add_u32 v{V_STG}, v{V_LANE}, 4, s{S_SOFF}")
    tr_lane_base128(a, V_LB, V_LANE, V_T0, V_T1)
    a(f"v_xor_b32 v{V_LB+1}, 64, v{V_LB}")
    SUM, SQ, ONES = ACC, ACC + 2, ACC + 4
    for i in range(4): a(f"v_mov_b32 v{SUM+i}, 0")
    a(f"v_mov_b32 v{ONES}, 0x3f803f80")
    XA = ACC + 8
    a(f"v_lshrrev_b32 v{XA+4}, 1, v{V_PI}")
    a(f"v_and_b32 v{XA+4}, 7, v{XA+4}")
    a(f"v_xor_b32 v{XA+4}, v{XA+4}, v{V_HI}")
    a(f"v_lshlrev_b32 v{XA+5}, 7, v{V_PI}")
    a(f"v_add_u32 v{XA+5}, s{S_LDS}, v{XA+5}")
    for sub in range(4):
        a(f"v_xor_b32 v{XA+sub}, {2*sub}, v{XA+4}")
        a(f"v_lshl_add_u32 v{XA+sub}, v{XA+sub}, 4, v{XA+5}")
    def stats(c):
        for r in range(XB + 16 * c, XB + 16 * c + 16):
            a(f"v_dot2c_f32_bf16 v{SUM + (r & 1)}, v{r}, v{ONES}")
            a(f"v_dot2c_f32_bf16 v{SQ + (r & 1)}, v{r}, v{r}")
    def xreads(c):
        for sub in range(4):
            r = XB + 16 * c + 4 * sub
            a(f"ds_read_b128 v[{r}:{r+3}], v{XA+sub} offset:{c*4096}")
    for j, c0 in enumerate(STARTS):
        if j > 0: a.label(f"{name}_xr{j}")
        if j < 3:
            a(f"s_cmp_eq_u32 s{S_ROT}, {j}")
            a(f"s_cbranch_scc0 {name}_xr{j+1}")
        order = [(c0 + i) % 9 for i in range(9)]
        for i, c in enumerate(order):
            a(f"s_waitcnt vmcnt({32 - 4*i})")
            if "pst" in dbg and "lat" not in dbg and i == 0: stamp_at(3)
            if "pst" in dbg and "lat" not in dbg and i == 8: stamp_at(4)
            xreads(c)
            if i > 0:
                a("s_waitcnt lgkmcnt(4)")
                stats(order[i - 1])
        a("s_waitcnt lgkmcnt(0)")
        a("s_barrier")
        if "pst" in dbg: stamp_at(5)
        stats(order[8])
        if j < 3: a(f"s_branch {name}_xrd")
    a.label(f"{name}_xrd")
    if "pst" not in dbg: stamp_at(2)
    a("s_nop 2")
    a(f"v_add_f32 v{SUM}, v{SUM}, v{SUM+1}")
    a(f"v_add_f32 v{SQ}, v{SQ}, v{SQ+1}")
    a("s_nop 0")
    a(f"v_mov_b32 v{SUM+1}, v{SUM}")
    a(f"v_mov_b32 v{SQ+1}, v{SQ}")
    a("s_nop 1")
    a(f"v_permlane32_swap_b32 v{SUM}, v{SUM+1}")
    a(f"v_permlane32_swap_b32 v{SQ}, v{SQ+1}")
    a("s_nop 1")
    a(f"v_add_f32 v{SUM}, v{SUM}, v{SUM+1}")
    a(f"v_add_f32 v{SQ}, v{SQ}, v{SQ+1}")
    a(f"v_mul_f32 v{SUM}, {f2h(1.0/576)}, v{SUM}")
    a(f"v_mul_f32 v{SQ}, {f2h(1.0/576)}, v{SQ}")
    a(f"v_fma_f32 v{SQ}, -v{SUM}, v{SUM}, v{SQ}")
    a(f"v_max_f32 v{SQ}, 0, v{SQ}")
    a(f"v_add_f32 v{SQ}, {f2h(1e-5)}, v{SQ}")
    a(f"v_rsq_f32 v{SQ}, v{SQ}")
    a("s_nop 0")
    RR, CC = TMP + 4, TMP + 6
    a(f"v_mul_f32 v{RR}, {f2h(LOG2E)}, v{SQ}")
    a(f"v_mov_b32 v{RR+1}, v{RR}")
    a(f"v_mul_f32 v{CC}, v{SUM}, v{RR}")
    a(f"v_sub_f32 v{CC}, 0, v{CC}")
    a(f"v_mov_b32 v{CC+1}, v{CC}")
    def normalise(ks):
        L = []
        T = TMP
        for r in range(XB + 4 * ks, XB + 4 * ks + 4, 2):
            for j in range(2):
                L.append(f"v_lshlrev_b32 v{T+2*j}, 16, v{r+j}")
                L.append(f"v_and_b32 v{T+2*j+1}, 0xffff0000, v{r+j}")
            for j in range(2):
                L.append(f"v_pk_fma_f32 v[{T+2*j}:{T+2*j+1}], v[{T+2*j}:{T+2*j+1}], v[{RR}:{RR+1}], v[{CC}:{CC+1}]")
            for j in range(2):
                L.append(f"v_cvt_pk_bf16_f32 v{r+j}, v{T+2*j}, v{T+2*j+1}")
        return L
    NPRE = 3 if "jit" in dbg else 36
    for ks in range(NPRE):
        for l in normalise(ks): a(l)
    if "pst" not in dbg: stamp_at(3)

    def base_reg(slot): return V_RA + (slot & 1)
    def set_base(slot, t): return f"v_add_u32 v{base_reg(slot)}, {slot*SLOT}, v{V_LB+t}"
    def frag_reads(i, slot):
        r = WR + 4 * (i % D)
        j = i % 18
        off = (j & 1) * REG + (j >> 1) * 2048
        return [f"ds_read_b64_tr_b16 v[{r}:{r+1}], v{base_reg(slot)} offset:{off}",
                f"ds_read_b64_tr_b16 v[{r+2}:{r+3}], v{base_reg(slot)} offset:{off+512}"]
    def silu_epilogue(st, direct=False):
        g, u = st, st + 16
        buf = 0 if st == ACC else 1
        direct = direct or not STAGE
        L = []
        for r in range(0, 16, 2):
            t = TMP + 2 * ((r // 2) % 4)
            L.append(f"v_exp_f32 v{t}, -v{g+r}")
            L.append(f"v_exp_f32 v{t+1}, -v{g+r+1}")
            L.append(f"v_mul_f32 v{u+r}, v{g+r}, v{u+r}")
            L.append(f"v_mul_f32 v{u+r+1}, v{g+r+1}, v{u+r+1}")
            L.append(f"v_add_f32 v{t}, 1.0, v{t}")
            L.append(f"v_add_f32 v{t+1}, 1.0, v{t+1}")
            L.append(f"v_rcp_f32 v{t}, v{t}")
            L.append(f"v_rcp_f32 v{t+1}, v{t+1}")
            if r > 0:
                L.append(f"v_cvt_pk_bf16_f32 v{u + r//2 - 1}, v{g+r-2}, v{g+r-1}")
            else:
                L.append("s_nop 0")
            L.append(f"v_mul_f32 v{g+r}, v{u+r}, v{t}")
            L.append(f"v_mul_f32 v{g+r+1}, v{u+r+1}, v{t+1}")
            if r == 8:
                if direct: L.append(f"buffer_store_dwordx4 v[{u}:{u+3}], v{V_HADDR}, s[{SRD_H}:{SRD_H+3}], s{S_HOFF} offen{STF}")
                else: L.append(f"ds_write_b128 v{V_STG}, v[{u}:{u+3}] offset:{buf*8192}")
        L.append(f"v_cvt_pk_bf16_f32 v{u+7}, v{g+14}, v{g+15}")
        if direct: L.append(f"buffer_store_dwordx4 v[{u+4}:{u+7}], v{V_HADDR}, s[{SRD_H}:{SRD_H+3}], s{S_HOFF} offen offset:1024{STF}")
        else: L.append(f"ds_write_b128 v{V_STG}, v[{u+4}:{u+7}] offset:{buf*8192+1024}")
        if not STAGE: L.append(f"s_add_u32 s{S_HOFF}, s{S_HOFF}, 2048")
        return L
    S_EPOFF2 = 53
    def tile_epilogue(acc):
        L = []
        for r in range(0, 16, 2):
            L.append(f"v_mul_f32 v{acc+r}, s{S_EPMUL}, v{acc+r}")
            L.append(f"v_mul_f32 v{acc+r+1}, s{S_EPMUL}, v{acc+r+1}")
            L.append(f"v_cvt_pk_bf16_f32 v{acc + r//2}, v{acc+r}, v{acc+r+1}")
        L.append(f"buffer_store_dwordx4 v[{acc}:{acc+3}], v{V_EPADDR}, s[{SRD_EP}:{SRD_EP+3}], s{S_EPOFF} offen{STF}")
        L.append(f"buffer_store_dwordx4 v[{acc+4}:{acc+7}], v{V_EPADDR}, s[{SRD_EP}:{SRD_EP+3}], s{S_EPOFF2} offen{STF}")
        return L
    def start_reads(slot, t, barrier):
        if barrier: a("s_barrier")
        a(set_base(slot, t))
        for i in range(D):
            for l in frag_reads(i, slot): a(l)
    def emit_job(slot0, t, nxt, mfma_of, fillers, placed=None):
        groups = []
        total = 36 + (D if nxt else 0)
        for i in range(36):
            g = []
            if i % 2 == 0:
                issued_upto = min(i + D - 1, total - 1)
                g.append(f"s_waitcnt lgkmcnt({2 * (issued_upto - (i + 1))})")
            g.append(mfma_of(i))
            j = i + D
            if j < total:
                if j == 18:
                    if t == 0: g.append("s_barrier")
                    g.append(set_base(slot0 + 1, t))
                if j == 36:
                    if nxt[2]: g.append("s_barrier")
                    g.append(set_base(nxt[0], nxt[1]))
                slot = slot0 + (j // 18) if j < 36 else nxt[0]
                g += frag_reads(j % 36, slot)
            groups.append(g)
        if placed:
            for pos, ins in placed: groups[min(pos, 35)] += ins
        if "noepi" in dbg: fillers = []
        for l in interleave(groups, fillers, start=3, end=34):
            if "nostore" in dbg and l.startswith("buffer_store"): continue
            if "notr" in dbg and (l.startswith("ds_read") or l.startswith("s_waitcnt lgkm")): continue
            if "halftr" in dbg and l.startswith("ds_read") and ("offset:" in l) and (int(l.split("offset:")[1]) // 2048) % 2 == 1: continue
            a(l)
    assert 36 % D == 0 and 18 % D == 0
    def pair_mfma(st, kh):
        def f(i):
            s, j = divmod(i, 18)
            ks = 18 * kh + 9 * s + (j >> 1)
            acc = st + 16 * (j & 1)
            c = "0" if (kh == 0 and i < 2) else f"v[{acc}:{acc+15}]"
            r = WR + 4 * (i % D)
            return f"v_mfma_f32_32x32x16_bf16 v[{acc}:{acc+15}], v[{r}:{r+3}], v[{XB+4*ks}:{XB+4*ks+3}], {c}"
        return f
    def tile_mfma(acc, swap):
        def f(i):
            s, j = divmod(i, 18)
            ks = 18 * s + 9 * (j & 1) + (j >> 1)
            c = "0" if i == 0 else f"v[{acc}:{acc+15}]"
            r = WR + 4 * (i % D)
            w = f"v[{r}:{r+3}]"; x = f"v[{XB+4*ks}:{XB+4*ks+3}]"
            A, B = (x, w) if swap else (w, x)
            return f"v_mfma_f32_32x32x16_bf16 v[{acc}:{acc+15}], {A}, {B}, {c}"
        return f
    SA, SB = ACC, ACC + 32
    start_reads(0, 0, True)
    def jit(first, last, lead):
        return [(max(0, 2 * (ks - first) + lead), normalise(ks)) for ks in range(first, last)]
    emit_job(0, 0, (0, 1, False), pair_mfma(SA, 0), [], placed=[(2 * (ks - NPRE), normalise(ks)) for ks in range(min(NPRE, 18), 18)])
    emit_job(0, 1, (2, 0, True), pair_mfma(SB, 0), [], placed=[(2 * (ks - 18), normalise(ks)) for ks in range(max(NPRE, 18), 36)])
    a(f"s_mov_b32 s{S_CNT}, s{S_NQUAD}")
    a(f"s_branch {name}_q2")
    a.label(f"{name}_quadloop")
    emit_job(0, 0, (0, 1, False), pair_mfma(SA, 0), silu_epilogue(SB))
    emit_job(0, 1, (2, 0, True), pair_mfma(SB, 0), [])
    a.label(f"{name}_q2")
    emit_job(2, 0, (2, 1, False), pair_mfma(SA, 1), [])
    emit_job(2, 1, (0, 0, True), pair_mfma(SB, 1), silu_epilogue(SA))
    a(f"s_sub_u32 s{S_CNT}, s{S_CNT}, 1")
    a(f"s_cmp_lg_u32 s{S_CNT}, 0")
    a(f"s_cbranch_scc1 {name}_quadloop")
    if "pst" not in dbg: stamp_at(4)
    a(f"s_lshl_b32 s{S_TILE}, s{S_DT0}, 1")
    QSC = 1.0 / (18 ** 0.5)
    def latch_epilogue():
        lv, le, lq = a.uid(name + "_lv"), a.uid(name + "_le"), a.uid(name + "_lq")
        a(f"s_cmp_ge_u32 s{S_TILE}, 36")
        a(f"s_cbranch_scc1 {lv}")
        a(f"s_lshl_b32 s{S_EPOFF}, s{S_TILE}, 17")
        a(f"s_add_u32 s{S_EPOFF2}, s{S_EPOFF}, {GRP}")
        a(f"s_mov_b32 s{S_EPMUL}, {f2h(QSC)}")
        a(f"s_cmp_lt_u32 s{S_TILE}, 18")
        a(f"s_cbranch_scc1 {lq}")
        a(f"s_mov_b32 s{S_EPMUL}, {f2h(1.0/LOG2E)}")
        a.label(lq)
        make_srd(a, SRD_EP, 12, 13, WS_QK, SZ_QK)
        a(f"v_mov_b32 v{V_EPADDR}, v{V_QKADDR}")
        a(f"s_branch {le}")
        a.label(lv)
        a(f"s_sub_u32 s{S_EPOFF}, s{S_TILE}, 36")
        a(f"s_lshl_b32 s{S_EPOFF}, s{S_EPOFF}, 17")
        a(f"s_add_u32 s{S_EPOFF2}, s{S_EPOFF}, 32")
        a(f"s_mov_b32 s{S_EPMUL}, {f2h(1.0/LOG2E)}")
        make_srd(a, SRD_EP, 12, 13, WS_VT, SZ_VT)
        a(f"v_mov_b32 v{V_EPADDR}, v{V_VTADDR}")
        a.label(le)
        a(f"s_add_u32 s{S_TILE}, s{S_TILE}, 1")
    ring = [SA, SA + 16, SB, SB + 16]
    for d in range(3):
        slot0 = (2 * d) % 4
        if d > 0:
            a(f"s_cmp_le_u32 s{S_NDT}, {d}")
            a(f"s_cbranch_scc1 {name}_fin{d}")
            start_reads(slot0, 0, True)
        for t in range(2):
            k = 2 * d + t
            acc = ring[k % 4]
            fill = silu_epilogue(SB, direct=True) if k == 0 else tile_epilogue(ring[(k - 1) % 4])
            nxt = (slot0, 1, False) if t == 0 else None
            lv, le = a.uid(name + "_v"), a.uid(name + "_e")
            a(f"s_cmp_ge_u32 s{S_TILE}, 36")
            a(f"s_cbranch_scc1 {lv}")
            emit_job(slot0, t, nxt, tile_mfma(acc, False), fill)
            a(f"s_branch {le}")
            a.label(lv)
            emit_job(slot0, t, nxt, tile_mfma(acc, True), fill)
            a.label(le)
            latch_epilogue()
    for d in (3, 2, 1):
        if d < 3: a.label(f"{name}_fin{d}")
        a("s_nop 7"); a("s_nop 3")
        for l in tile_epilogue(ring[(2 * d - 1) % 4]): a(l)
        a(f"s_branch {name}_done")
    a.label(f"{name}_done")
    if "pst" not in dbg: stamp_at(5)
    if stamp:
        a(f"s_memrealtime s[{S_ST+14}:{S_ST+15}]")
        emit_stamp_store(a, S_ST, 8)
    a("s_endpgm")

    a.label(f"{name}_loader")
    if "tlb" in dbg:
        make_srd(a, 36, 12, 13, 0, 0x3600000)
        a("s_lshr_b32 s34, s2, 3")
        a("s_lshl_b32 s34, s34, 2")
        a("s_add_u32 s34, s34, s3")
        a("s_sub_u32 s34, s34, 4")
        a("v_and_b32 v22, 7, v0")
        a("v_lshl_add_u32 v22, s34, 3, v22")
        a("v_lshlrev_b32 v22, 16, v22")
        a("buffer_load_dword v21, v22, s[36:39], 0 offen")
    lz = a.uid(name + "_lz")
    a("s_cmp_eq_u32 s2, 0")
    a(f"s_cbranch_scc0 {lz}")
    make_srd(a, 28, 12, 13, WS_F, SZ_F)
    a(f"v_lshlrev_b32 v20, 4, v0")
    a(f"v_subrev_u32 v20, 4096, v20")
    for r in range(4): a(f"v_mov_b32 v{24+r}, 0")
    for r in range(3):
        a(f"s_mov_b32 s32, {r*4096}")
        a(f"buffer_store_dwordx4 v[24:27], v20, s[28:31], s32 offen sc0 sc1")
    a.label(lz)
    S_NS, S_N, S_M, S_B13, S_BQ, S_LB, S_PFI = 44, 45, 49, 50, 51, 52, 53
    S_SO = 54
    V_L13, V_LQ, V_P13, V_PQ = 10, 11, 12, 13
    a(f"s_sub_u32 s{S_WAVE}, s{S_WAVE}, 4")
    a(f"s_cmp_ge_u32 s{S_WAVE}, 2")
    a(f"s_cselect_b32 s{SRD_W}, s10, s8")
    a(f"s_cselect_b32 s{SRD_W+1}, s11, s9")
    a(f"s_mov_b32 s{SRD_W+2}, {hex(576*4608*2)}")
    a(f"s_mov_b32 s{SRD_W+3}, 0x20000")
    make_srd(a, SRD_WQ, 6, 7, 0, 576 * 1728 * 2)
    a(f"s_movk_i32 s{S_TMP}, 9216")
    dma_lane_offset128(a, V_L13, V_LANE, S_TMP, V_T0, V_T1)
    a(f"s_movk_i32 s{S_TMP2}, 3456")
    dma_lane_offset128(a, V_LQ, V_LANE, S_TMP2, V_T0, V_T1)
    a(f"s_and_b32 s{S_PFI}, s{S_RB}, 7")
    a(f"s_mul_i32 s{S_PFI}, s{S_PFI}, 9")
    a(f"v_add_u32 v{V_T0}, s{S_PFI}, v{V_LANE}")
    a(f"v_mul_lo_u32 v{V_P13}, v{V_T0}, s{S_TMP}")
    a(f"v_mul_lo_u32 v{V_PQ}, v{V_T0}, s{S_TMP2}")
    a(f"v_cmp_gt_u32 vcc, 9, v{V_LANE}")
    a(f"v_mov_b32 v{V_T1}, 0x7fffffff")
    a("s_nop 1")
    a(f"v_cndmask_b32 v{V_P13}, v{V_T1}, v{V_P13}, vcc")
    a(f"v_cndmask_b32 v{V_PQ}, v{V_T1}, v{V_PQ}, vcc")
    a(f"s_and_b32 s{S_TMP}, s{S_WAVE}, 1")
    a(f"s_mul_i32 s{S_B13}, s{S_TMP}, {72*9216}")
    a(f"s_lshl_b32 s{S_TMP2}, s{S_Q0}, 7")
    a(f"s_add_u32 s{S_B13}, s{S_B13}, s{S_TMP2}")
    a(f"s_mul_i32 s{S_BQ}, s{S_TMP}, {72*3456}")
    a(f"s_lshr_b32 s{S_TMP}, s{S_WAVE}, 1")
    a(f"s_mul_i32 s{S_TMP}, s{S_TMP}, {144*3456}")
    a(f"s_add_u32 s{S_BQ}, s{S_BQ}, s{S_TMP}")
    a(f"s_lshl_b32 s{S_TMP2}, s{S_DT0}, 7")
    a(f"s_add_u32 s{S_BQ}, s{S_BQ}, s{S_TMP2}")
    a(f"s_mul_i32 s{S_LB}, s{S_WAVE}, 9216")
    S_HB, S_HO = 55, 56
    V_SA, V_HA = 14, 15
    make_srd(a, SRD_H, 12, 13, WS_H, SZ_H)
    a(f"s_lshl_b32 s{S_TMP}, s{S_RB}, 2")
    a(f"s_add_u32 s{S_TMP}, s{S_TMP}, s{S_WAVE}")
    a(f"s_mul_i32 s{S_HB}, s{S_TMP}, {288*1024}")
    a(f"s_lshl_b32 s{S_TMP}, s{S_Q0}, 12")
    a(f"s_add_u32 s{S_HB}, s{S_HB}, s{S_TMP}")
    a(f"v_lshlrev_b32 v{V_HA}, 4, v{V_LANE}")
    a(f"s_lshl_b32 s{S_TMP}, s{S_WAVE}, 11")
    a(f"s_add_u32 s{S_TMP}, s{S_TMP}, {STG}")
    a(f"v_add_u32 v{V_SA}, s{S_TMP}, v{V_HA}")
    def hand_over():
        ld = a.uid(name + "_ho")
        a(f"s_and_b32 s{S_TMP}, s{S_N}, 3")
        a(f"s_sub_u32 s{S_TMP}, s{S_TMP}, 1")
        a(f"s_cmp_gt_u32 s{S_TMP}, 1")
        a(f"s_cbranch_scc1 {ld}")
        a(f"s_lshl_b32 s{S_TMP2}, s{S_TMP}, 13")
        a(f"v_add_u32 v16, s{S_TMP2}, v{V_SA}")
        a(f"ds_read_b128 v[24:27], v16")
        a(f"ds_read_b128 v[28:31], v16 offset:1024")
        a(f"s_lshr_b32 s{S_HO}, s{S_N}, 2")
        a(f"s_lshl_b32 s{S_HO}, s{S_HO}, 1")
        a(f"s_add_u32 s{S_HO}, s{S_HO}, s{S_TMP}")
        a(f"s_sub_u32 s{S_HO}, s{S_HO}, 2")
        a(f"s_lshl_b32 s{S_TMP2}, s{S_NQUAD}, 1")
        a(f"s_sub_u32 s{S_TMP2}, s{S_TMP2}, 1")
        a(f"s_cmp_lt_u32 s{S_HO}, s{S_TMP2}")
        a(f"s_cselect_b32 s{S_TMP2}, 1, 0")
        a(f"s_lshl_b32 s{S_HO}, s{S_HO}, 11")
        a(f"s_add_u32 s{S_HO}, s{S_HO}, s{S_HB}")
        a(f"s_cmp_eq_u32 s{S_TMP2}, 1")
        a(f"s_cselect_b32 s{S_HO}, s{S_HO}, 0x7ff00000")
        a("s_waitcnt lgkmcnt(0)")
        a(f"buffer_store_dwordx4 v[24:27], v{V_HA}, s[{SRD_H}:{SRD_H+3}], s{S_HO} offen{STF}")
        a(f"buffer_store_dwordx4 v[28:31], v{V_HA}, s[{SRD_H}:{SRD_H+3}], s{S_HO} offen offset:1024{STF}")
        a.label(ld)
    a(f"s_lshl_b32 s{S_NS}, s{S_NQUAD}, 1")
    a(f"s_add_u32 s{S_NS}, s{S_NS}, s{S_NDT}")
    a(f"s_lshl_b32 s{S_NS}, s{S_NS}, 1")
    def slot_offset(m_sgpr, lab_q, lab_done):
        a(f"s_lshl_b32 s{S_TMP}, s{S_NQUAD}, 2")
        a(f"s_cmp_ge_u32 s{m_sgpr}, s{S_TMP}")
        a(f"s_cbranch_scc1 {lab_q}")
        a(f"s_lshr_b32 s{S_TMP}, s{m_sgpr}, 2")
        a(f"s_lshl_b32 s{S_TMP}, s{S_TMP}, 7")
        a(f"s_and_b32 s{S_TMP2}, s{m_sgpr}, 3")
        a(f"s_mul_i32 s{S_TMP2}, s{S_TMP2}, {144*9216}")
        a(f"s_add_u32 s{S_SO}, s{S_B13}, s{S_TMP}")
        a(f"s_add_u32 s{S_SO}, s{S_SO}, s{S_TMP2}")
    def slot_offset_q(m_sgpr):
        a(f"s_sub_u32 s{S_TMP}, s{m_sgpr}, s{S_TMP}")
        a(f"s_and_b32 s{S_TMP2}, s{S_TMP}, 1")
        a(f"s_mul_i32 s{S_TMP2}, s{S_TMP2}, {288*3456}")
        a(f"s_lshr_b32 s{S_TMP}, s{S_TMP}, 1")
        a(f"s_lshl_b32 s{S_TMP}, s{S_TMP}, 7")
        a(f"s_add_u32 s{S_SO}, s{S_BQ}, s{S_TMP}")
        a(f"s_add_u32 s{S_SO}, s{S_SO}, s{S_TMP2}")
    def dma_batch(vo, srd, step):
        for j in range(9):
            if "noload" not in dbg:
                a(f"buffer_load_dwordx4 v{vo}, s[{srd}:{srd+3}], s{S_SO} offen lds")
            if j < 8:
                a(f"s_add_u32 m0, m0, 1024")
                a(f"s_add_u32 s{S_SO}, s{S_SO}, {step}")
    def issue(m_sgpr):
        lq, ld = a.uid(name + "_iq"), a.uid(name + "_id")
        a(f"s_and_b32 s{S_TMP}, s{m_sgpr}, 3")
        a(f"s_mul_i32 s{S_TMP}, s{S_TMP}, {SLOT}")
        a(f"s_add_u32 m0, s{S_TMP}, s{S_LB}")
        slot_offset(m_sgpr, lq, ld)
        dma_batch(V_L13, SRD_W, 8 * 9216)
        a(f"s_branch {ld}")
        a.label(lq)
        slot_offset_q(m_sgpr)
        dma_batch(V_LQ, SRD_WQ, 8 * 3456)
        a.label(ld)
    def prefetch(m_sgpr):
        lq, ld = a.uid(name + "_pq"), a.uid(name + "_pd")
        slot_offset(m_sgpr, lq, ld)
        if "k1oob" in dbg: a(f"s_mov_b32 s{S_SO}, 0x7ffff000")
        a(f"buffer_load_dword v20, v{V_P13}, s[{SRD_W}:{SRD_W+3}], s{S_SO} offen")
        a(f"s_branch {ld}")
        a.label(lq)
        slot_offset_q(m_sgpr)
        a(f"s_cmp_ge_u32 s{m_sgpr}, s{S_NS}")
        a(f"s_cselect_b32 s{S_SO}, 0x7ffff000, s{S_SO}")
        a(f"buffer_load_dword v20, v{V_PQ}, s[{SRD_WQ}:{SRD_WQ+3}], s{S_SO} offen")
        a.label(ld)
    for m in range(PD):
        a(f"s_mov_b32 s{S_M}, {m}")
        prefetch(S_M)
    a("s_barrier")
    a(f"s_mov_b32 s{S_N}, 0")
    a.label(f"{name}_lpro")
    issue(S_N)
    a(f"s_add_u32 s{S_M}, s{S_N}, {PD}")
    prefetch(S_M)
    a(f"s_add_u32 s{S_N}, s{S_N}, 1")
    a(f"s_cmp_lt_u32 s{S_N}, 3")
    a(f"s_cbranch_scc1 {name}_lpro")
    a("s_waitcnt vmcnt(21)")
    a("s_barrier")
    a(f"s_mov_b32 s{S_N}, 1")
    a.label(f"{name}_lloop")
    a(f"s_add_u32 s{S_M}, s{S_N}, 1")
    a(f"s_cmp_ge_u32 s{S_M}, s{S_NS}")
    a(f"s_cbranch_scc1 {name}_llast")
    if not STAGE:
        a("s_waitcnt vmcnt(11)")
    else:
        w11, w15, wd = a.uid(name + "_w"), a.uid(name + "_w"), a.uid(name + "_w")
        a(f"s_and_b32 s{S_TMP}, s{S_N}, 3")
        a(f"s_cmp_eq_u32 s{S_TMP}, 1")
        a(f"s_cbranch_scc1 {w11}")
        a(f"s_cmp_eq_u32 s{S_TMP}, 3")
        a(f"s_cbranch_scc1 {w15}")
        a("s_waitcnt vmcnt(13)")
        a(f"s_branch {wd}")
        a.label(w15)
        a("s_waitcnt vmcnt(15)")
        a(f"s_branch {wd}")
        a.label(w11)
        a("s_waitcnt vmcnt(11)")
        a.label(wd)
    a("s_barrier")
    a(f"s_add_u32 s{S_M}, s{S_N}, 2")
    a(f"s_cmp_ge_u32 s{S_M}, s{S_NS}")
    a(f"s_cbranch_scc1 {name}_lnoi")
    issue(S_M)
    a(f"s_add_u32 s{S_M}, s{S_M}, {PD}")
    prefetch(S_M)
    a.label(f"{name}_lnoi")
    if STAGE: hand_over()
    a.label(f"{name}_lnext")
    a(f"s_add_u32 s{S_N}, s{S_N}, 1")
    a(f"s_branch {name}_lloop")
    a.label(f"{name}_llast")
    a("s_waitcnt vmcnt(0)")
    a("s_barrier")
    if STAGE: hand_over()
    if "now2" not in dbg:
        a("s_load_dwordx2 s[4:5], s[0:1], 48")
        a("s_load_dwordx2 s[6:7], s[0:1], 16")
        a(f"s_lshl_b32 s{S_TMP}, s2, 2")
        a(f"s_add_u32 s{S_TMP}, s{S_TMP}, s{S_WAVE}")
        a(f"s_mul_i32 s{S_TMP2}, s{S_TMP}, {41*128}")
        a(f"v_lshlrev_b32 v{V_T0}, 7, v{V_LANE}")
        a(f"v_cmp_gt_u32 vcc, 41, v{V_LANE}")
        a(f"v_mov_b32 v{V_T1}, 0x7fffffff")
        a("s_waitcnt lgkmcnt(0)")
        a(f"v_cndmask_b32 v21, v{V_T1}, v{V_T0}, vcc")
        make_srd(a, 28, 4, 5, 0, 4608 * 1152)
        a(f"buffer_load_dword v20, v21, s[28:31], s{S_TMP2} offen")
        a(f"s_mul_i32 s{S_TMP2}, s{S_TMP}, {6*128}")
        a(f"v_cmp_gt_u32 vcc, 6, v{V_LANE}")
        make_srd(a, 32, 6, 7, 0, 576 * 1152)
        a(f"v_cndmask_b32 v22, v{V_T1}, v{V_T0}, vcc")
        a(f"buffer_load_dword v20, v22, s[32:35], s{S_TMP2} offen")
    a.label(END)
    a("s_endpgm")
    return a.text() + kernel_descriptor(name, 256, 256)
```

```python
from lib import *
from k1 import f2h, perm_pi, emit_stamp_store

KB = 2 * 256 * 32
VROW = 512
VB = 20 * VROW
BUF = KB + VB
NBUF = 3
LDS_FLAG = NBUF * BUF
LDS_BYTES = LDS_FLAG + 64
OFF_SHIFT = 80.0
LAUNCH = ("k2_kernel", 256 + 16 * 3 * NSPLIT, 256, LDS_BYTES)

def publish(a, s_off):
    make_srd(a, 36, 12, 13, WS_F, SZ_F)
    a("v_mov_b32 v4, 1")
    a(f"v_and_b32 v5, 63, v0")
    a(f"v_cmp_eq_u32 vcc, 0, v5")
    a(f"v_mov_b32 v5, 0x7fffffff")
    a("s_nop 0")
    a(f"v_cndmask_b32 v5, v5, 0, vcc")
    a("s_waitcnt vmcnt(0)")
    a(f"buffer_store_dword v4, v5, s[36:39], s{s_off} offen sc0 sc1")

def gen_k2(name="k2_kernel", stamp=False, dbg=""):
    import kd, k3
    fused = not any(k in dbg for k in ("nofuse", "noattn", "nodown"))
    a = Asm()
    kernel_header(a, name)
    END = name + "_end"
    a("s_load_dwordx2 s[76:77], s[0:1], 0")
    a("s_load_dwordx2 s[78:79], s[0:1], 16")
    a("s_load_dwordx2 s[80:81], s[0:1], 56")
    a("s_load_dwordx2 s[82:83], s[0:1], 72")
    if "fst" in dbg:
        a("s_memtime s[60:61]")
        a("s_memrealtime s[72:73]")
    a("s_cmp_ge_u32 s2, 256")
    a(f"s_cbranch_scc1 {name}_down")
    if "noattn" not in dbg:
        attention_body(a, name, stamp, dbg)
    if fused:
        a("s_lshl_b32 s59, s15, 2")
        a("s_add_u32 s59, s59, s3")
        a("s_lshl_b32 s59, s59, 5")
        a("s_add_u32 s59, s59, s14")
        a("s_lshl_b32 s59, s59, 2")
        publish(a, 59)
        a("s_cmp_lt_u32 s2, 208")
        a(f"s_cbranch_scc1 {END}")
        a("s_add_u32 s58, s2, 32")
        if "nolate" in dbg:
            a(f"s_branch {name}_final")
        else:
            k3.final_pre(a, name + "_l", "fst" in dbg, dbg, "s58", fused=True)
            k3.final_post(a, name + "_l", "fst" in dbg, dbg, fused=True, late=True)
            a("s_endpgm")
    else:
        a("s_endpgm")
    a.label(f"{name}_down")
    a(f"s_cmp_ge_u32 s2, {256 + 16 * 3 * NSPLIT}")
    a(f"s_cbranch_scc1 {END}")
    if "nodown" not in dbg:
        a("s_sub_u32 s58, s2, 256")
        kd.down_body(a, name + "_d", stamp, dbg, "s58")
    if fused:
        a("s_lshl_b32 s59, s14, 2")
        a("s_add_u32 s59, s59, s3")
        a("s_mul_i32 s59, s59, 3")
        a("s_add_u32 s59, s59, s15")
        a("s_lshl_b32 s59, s59, 3")
        a("s_add_u32 s59, s59, s40")
        a("s_lshl_b32 s59, s59, 2")
        a(f"s_add_u32 s59, s59, {FLAG_G}")
        publish(a, 59)
        a("s_barrier")
        a.label(f"{name}_final")
        k3.final_pre(a, name + "_f", "fst" in dbg, dbg, "s58", fused=True)
        k3.final_post(a, name + "_f", "fst" in dbg, dbg, fused=True)
    a.label(END)
    a("s_endpgm")
    return a.text() + kernel_descriptor(name, 240, 240)

def attention_body(a, name, stamp, dbg, wg="s2"):
    S_WAVE, S_HEAD, S_QB = 3, 14, 15
    SRD_Q, SRD_K, SRD_V, SRD_O = 16, 20, 24, 28
    S_TMP, S_TMP2, S_CH, S_MODE = 40, 41, 42, 43
    S_M0K, S_M0V, S_LB, S_LBN, S_KSRC, S_VSRC = 44, 45, 46, 47, 48, 49
    S_Q0, S_W0, S_LBX, S_I, S_NT = 50, 51, 52, 53, 54
    S_KW = 9
    S_ST = 60
    V_LANE, V_N, V_HI, V_PI, V_T0, V_T1 = 1, 2, 3, 4, 5, 6
    V_KA = 7
    V_VA = 10
    V_DK, V_DV = 18, 19
    V_MX = 22
    V_KC, V_VC = 24, 26
    Q1, Q2 = 36, 44
    KF1, KF2 = 52, 60
    VF = 68
    SS = 84
    PP = 116
    OO = 132
    CM = 164
    AD = 196
    S_U0, S_OO = 55, 59
    def stamp_at(i):
        if stamp: a(f"s_memtime s[{S_ST+2*i}:{S_ST+2*i+1}]")
    def put(l):
        if l.endswith(":"): a.label(l[:-1])
        else: a(l)
    if "win" in dbg: a("s_setprio 2")
    a("s_load_dwordx2 s[12:13], s[0:1], 72")
    stamp_at(0)
    if stamp: a(f"s_memrealtime s[{S_ST+12}:{S_ST+13}]")
    a("v_lshrrev_b32 v1, 6, v0")
    a(f"s_and_b32 s14, {wg}, 7")
    a(f"v_readfirstlane_b32 s{S_WAVE}, v1")
    a("s_lshl_b32 s14, s14, 2")
    a(f"s_bfe_u32 s15, {wg}, 0x20003")
    a(f"s_add_u32 s{S_HEAD}, s14, s15")
    a(f"s_lshr_b32 s{S_QB}, {wg}, 5")
    a(f"v_and_b32 v{V_LANE}, 63, v0")
    a(f"v_and_b32 v{V_N}, 31, v{V_LANE}")
    a(f"v_lshrrev_b32 v{V_HI}, 5, v{V_LANE}")
    perm_pi(a, V_PI, V_N, V_T0)
    a("s_waitcnt lgkmcnt(0)")
    a(f"s_mul_i32 s{S_TMP}, s{S_HEAD}, 18")
    a(f"s_lshr_b32 s{S_U0}, s{S_TMP}, 4")
    a(f"s_and_b32 s{S_OO}, s{S_TMP}, 15")
    a(f"s_lshl_b32 s{S_TMP}, s{S_U0}, 16")
    for srd, off in ((SRD_Q, WS_QK), (SRD_K, WS_QK + 36 * GRP)):
        a(f"s_add_u32 s{srd}, s12, {hex(off)}")
        a(f"s_addc_u32 s{srd+1}, s13, 0")
        a(f"s_add_u32 s{srd}, s{srd}, s{S_TMP}")
        a(f"s_addc_u32 s{srd+1}, s{srd+1}, 0")
        a(f"s_mov_b32 s{srd+2}, {2*GRP}")
        a(f"s_mov_b32 s{srd+3}, 0x20000")
    a(f"s_mul_i32 s{S_TMP}, s{S_HEAD}, {18*4096}")
    a(f"s_add_u32 s{SRD_V}, s12, {hex(WS_VT)}")
    a(f"s_addc_u32 s{SRD_V+1}, s13, 0")
    a(f"s_add_u32 s{SRD_V}, s{SRD_V}, s{S_TMP}")
    a(f"s_addc_u32 s{SRD_V+1}, s{SRD_V+1}, 0")
    a(f"s_mov_b32 s{SRD_V+2}, {18*4096}")
    a(f"s_mov_b32 s{SRD_V+3}, 0x20000")
    make_srd(a, SRD_O, 12, 13, WS_O, SZ_O)
    a(f"v_bfe_u32 v{V_T0}, v{V_LANE}, 4, 1")
    a(f"v_xor_b32 v{V_T0}, v{V_T0}, v{V_LANE}")
    a(f"v_lshlrev_b32 v{V_DK}, 4, v{V_T0}")
    a(f"v_xor_b32 v{V_T0}, v{V_N}, v{V_HI}")
    for i in range(3):
        a(f"s_add_u32 s{S_TMP}, s{S_WAVE}, {4*i}")
        a(f"s_lshl_b32 s{S_TMP}, s{S_TMP}, 1")
        a(f"s_and_b32 s{S_TMP2}, s{S_TMP}, 15")
        a(f"v_xor_b32 v{V_T1}, s{S_TMP2}, v{V_T0}")
        a(f"v_lshlrev_b32 v{V_T1}, 4, v{V_T1}")
        a(f"v_lshl_add_u32 v{V_T1}, v{V_HI}, 12, v{V_T1}")
        a(f"s_lshl_b32 s{S_TMP}, s{S_TMP}, 12")
        a(f"v_add_u32 v{V_DV+i}, s{S_TMP}, v{V_T1}")
    a(f"s_lshl_b32 s{S_M0K}, s{S_WAVE}, 12")
    a(f"s_lshr_b32 s{S_TMP}, s{S_WAVE}, 1")
    a(f"s_lshl_b32 s{S_TMP}, s{S_TMP}, 16")
    a(f"s_and_b32 s{S_KW}, s{S_WAVE}, 1")
    a(f"s_lshl_b32 s{S_KW}, s{S_KW}, 12")
    a(f"s_add_u32 s{S_KW}, s{S_KW}, s{S_TMP}")
    a(f"s_lshl_b32 s{S_M0V}, s{S_WAVE}, 10")
    a(f"s_add_u32 s{S_M0V}, s{S_M0V}, {KB}")
    a(f"s_cmp_eq_u32 s{S_WAVE}, 0")
    a(f"s_cselect_b32 s{S_W0}, 1, 0")
    def dma_groups():
        G = []
        for i in range(4):
            G.append([f"s_add_u32 m0, s{S_LBN}, s{S_M0K}" if i == 0 else "s_add_u32 m0, m0, 1024",
                      f"s_add_u32 s{S_TMP}, s{S_KSRC}, s{S_KW}" if i == 0 else f"s_add_u32 s{S_TMP}, s{S_TMP}, 1024",
                      f"buffer_load_dwordx4 v{V_DK}, s[{SRD_K}:{SRD_K+3}], s{S_TMP} offen lds"])
        for i in range(2):
            G.append([f"s_add_u32 m0, s{S_LBN}, s{S_M0V}" if i == 0 else "s_add_u32 m0, m0, 4096", "s_nop 0",
                      f"buffer_load_dwordx4 v{V_DV+i}, s[{SRD_V}:{SRD_V+3}], s{S_VSRC} offen lds"])
        lab = a.uid(name + "_w0")
        G.append([f"s_cmp_eq_u32 s{S_W0}, 0", f"s_cbranch_scc1 {lab}", "s_add_u32 m0, m0, 4096", "s_nop 0",
                  f"buffer_load_dwordx4 v{V_DV+2}, s[{SRD_V}:{SRD_V+3}], s{S_VSRC} offen lds", f"{lab}:"])
        return G
    def request(chunk_sgpr_or_imm, lds_base):
        if isinstance(chunk_sgpr_or_imm, int):
            a(f"s_mov_b32 s{S_KSRC}, {chunk_sgpr_or_imm * 8192}")
            a(f"s_mov_b32 s{S_VSRC}, {chunk_sgpr_or_imm * 512}")
        else:
            a(f"s_lshl_b32 s{S_KSRC}, {chunk_sgpr_or_imm}, 13")
            a(f"s_lshl_b32 s{S_VSRC}, {chunk_sgpr_or_imm}, 9")
        a(f"s_mov_b32 s{S_LBN}, {lds_base}")
        for g in dma_groups():
            for l in g: put(l)
    a(f"s_lshl_b32 s{S_Q0}, s{S_QB}, 8")
    a(f"s_lshl_b32 s{S_TMP2}, s{S_WAVE}, 6")
    a(f"s_add_u32 s{S_Q0}, s{S_Q0}, s{S_TMP2}")
    a(f"v_add_u32 v{V_T0}, s{S_Q0}, v{V_PI}")
    a(f"v_lshlrev_b32 v{V_T0}, 5, v{V_T0}")
    a(f"v_lshl_add_u32 v{V_T1}, v{V_HI}, 4, v{V_T0}")
    a(f"s_mov_b32 s{S_TMP}, {GRP}")
    for j in range(2):
        a(f"buffer_load_dwordx4 v[{Q1+4*j}:{Q1+4*j+3}], v{V_T1}, s[{SRD_Q}:{SRD_Q+3}], 0 offen offset:{j*1024}")
        a(f"buffer_load_dwordx4 v[{Q2+4*j}:{Q2+4*j+3}], v{V_T1}, s[{SRD_Q}:{SRD_Q+3}], s{S_TMP} offen offset:{j*1024}")
    request(0, 0)
    a(f"v_bfe_u32 v{V_T0}, v{V_PI}, 3, 1")
    a(f"v_xor_b32 v{V_T0}, v{V_T0}, v{V_HI}")
    a(f"v_lshlrev_b32 v{V_T0}, 4, v{V_T0}")
    a(f"v_lshl_add_u32 v{V_KA}, v{V_PI}, 5, v{V_T0}")
    a(f"v_and_b32 v{V_T1}, 15, v{V_PI}")
    a(f"v_xor_b32 v{V_T1}, v{V_T1}, v{V_HI}")
    a(f"v_cmp_gt_u32 vcc, 19, v{V_N}")
    a(f"v_mov_b32 v{V_T0}, 19")
    a("s_nop 0")
    a(f"v_cndmask_b32 v{V_T0}, v{V_T0}, v{V_PI}, vcc") if "nozrow" not in dbg else None
    if "nozrow" in dbg:
        a(f"v_subrev_u32 v{V_T0}, 16, v{V_PI}")
        a("s_nop 0")
        a(f"v_cndmask_b32 v{V_T0}, v{V_T0}, v{V_PI}, vcc")
    a(f"v_lshlrev_b32 v{V_T0}, 9, v{V_T0}")
    a(f"v_add_u32 v{V_T0}, {KB}, v{V_T0}")
    for c in range(8):
        kt, m = c >> 1, c & 1
        a(f"v_xor_b32 v{V_VA+c}, {4*kt + 2*m}, v{V_T1}")
        a(f"v_lshl_add_u32 v{V_VA+c}, v{V_VA+c}, 4, v{V_T0}")
    a(f"v_mov_b32 v{SS}, 0x3f803f80")
    a(f"v_cmp_gt_u32 vcc, 128, v0")
    a(f"v_lshlrev_b32 v{V_T0}, 2, v0")
    a("s_nop 0")
    a(f"v_cndmask_b32 v{SS}, 0, v{SS}, vcc")
    a(f"v_add_u32 v{V_T0}, {KB + 18*VROW}, v{V_T0}")
    for b in range(NBUF):
        a(f"ds_write_b32 v{V_T0}, v{SS} offset:{b*BUF}")
    a(f"s_mul_i32 s{S_TMP}, s{S_HEAD}, 3")
    a(f"v_add_u32 v{V_T0}, s{S_TMP}, v{V_HI}")
    a(f"v_lshlrev_b32 v{V_T1}, 4, v{V_N}")
    a(f"v_lshl_add_u32 v{AD}, v{V_T0}, 9, v{V_T1}")
    a(f"s_add_u32 s{S_TMP}, s{S_TMP}, 2")
    a(f"s_lshl_b32 s{S_TMP}, s{S_TMP}, 9")
    a(f"v_add_u32 v{AD+1}, s{S_TMP}, v{V_T1}")
    a(f"v_cmp_eq_u32 vcc, 0, v{V_HI}")
    a(f"v_mov_b32 v{SS+8}, 0x7fffffff")
    a("s_nop 0")
    a(f"v_cndmask_b32 v{AD+1}, v{SS+8}, v{AD+1}, vcc")
    def zero_state():
        for r in range(8):
            a(f"v_mov_b32 v{PP+8+r}, 0")
            a(f"v_mov_b32 v{VF+8+r}, 0")
    zero_state()
    a(f"s_mov_b32 s{S_MODE}, 0")
    a("s_waitcnt vmcnt(0) lgkmcnt(0)")
    a("s_barrier")
    stamp_at(1)
    a(f"v_lshlrev_b32 v{V_T0}, 3, v{V_HI}")
    a(f"s_add_u32 s{S_TMP}, s{S_OO}, 2")
    for p in range(4):
        a(f"v_add_u32 v{V_T1}, {2*p}, v{V_T0}")
        a(f"v_cmp_le_u32 vcc, s{S_OO}, v{V_T1}")
        a("s_nop 1")
        for j in range(2): a(f"v_cndmask_b32 v{Q1+4*j+p}, 0, v{Q1+4*j+p}, vcc")
        a(f"v_cmp_gt_u32 vcc, s{S_TMP}, v{V_T1}")
        a("s_nop 1")
        for j in range(2): a(f"v_cndmask_b32 v{Q2+4*j+p}, 0, v{Q2+4*j+p}, vcc")

    def set_k_addr(lb):
        return [f"v_add_u32 v{V_KC}, s{lb}, v{V_KA}"]
    def set_k_addr_imm(off):
        return [f"v_add_u32 v{V_KC}, {off}, v{V_KA}"]
    def set_v_addr(lb):
        return [f"v_add_u32 v{V_VC+c}, s{lb}, v{V_VA+c}" for c in range(8)]
    def k_reads(kt, s):
        return [f"ds_read_b128 v[{KF1+4*s}:{KF1+4*s+3}], v{V_KC} offset:{kt*1024}",
                f"ds_read_b128 v[{KF2+4*s}:{KF2+4*s+3}], v{V_KC} offset:{kt*1024+8192}"]
    def v_reads(kt, s):
        o = (kt >> 2) * 256
        return [f"ds_read_b128 v[{VF+8*s+4*m}:{VF+8*s+4*m+3}], v{V_VC+2*(kt&3)+m} offset:{o}" for m in range(2)]
    def qk(s, j, sb, shift=True):
        d = SS + 16 * sb
        c = f"v[{CM+16*j}:{CM+16*j+15}]" if shift else "0"
        return [f"v_mfma_f32_32x32x16_bf16 v[{d}:{d+15}], v[{KF1+4*s}:{KF1+4*s+3}], v[{Q1+4*j}:{Q1+4*j+3}], {c}",
                f"v_mfma_f32_32x32x16_bf16 v[{d}:{d+15}], v[{KF2+4*s}:{KF2+4*s+3}], v[{Q2+4*j}:{Q2+4*j+3}], v[{d}:{d+15}]"]
    def pv(s, j, pb):
        o = OO + 16 * j; p = PP + 8 * pb
        return [f"v_mfma_f32_32x32x16_bf16 v[{o}:{o+15}], v[{VF+8*s+4*m}:{VF+8*s+4*m+3}], v[{p+4*m}:{p+4*m+3}], v[{o}:{o+15}]" for m in range(2)]

    for l in set_k_addr_imm(0): a(l)
    for kt in range(2):
        for l in k_reads(kt, kt): a(l)
    bufs = [SS, SS + 16, OO, OO + 16]
    a("s_waitcnt lgkmcnt(2)")
    for kt in range(2):
        if kt == 1: a("s_waitcnt lgkmcnt(0)")
        for j in range(2):
            d = bufs[2 * kt + j]
            a(f"v_mfma_f32_32x32x16_bf16 v[{d}:{d+15}], v[{KF1+4*kt}:{KF1+4*kt+3}], v[{Q1+4*j}:{Q1+4*j+3}], 0")
            a(f"v_mfma_f32_32x32x16_bf16 v[{d}:{d+15}], v[{KF2+4*kt}:{KF2+4*kt+3}], v[{Q2+4*j}:{Q2+4*j+3}], v[{d}:{d+15}]")
    request(1, BUF)
    for kt in range(2):
        for j in range(2):
            d = bufs[2 * kt + j]
            if kt == 1 and j == 0: a("s_nop 7")
            for r in range(0, 16, 2):
                prev = f"v{V_MX+j}" if (kt or r) else f"v{d}"
                a(f"v_max3_f32 v{V_MX+j}, v{d+r}, v{d+r+1}, {prev}")
    a(f"s_branch {name}_maxdone")
    a.label(f"{name}_maxpass")
    for j in range(2):
        a(f"v_mov_b32 v{V_MX+j}, 0xff800000")
    a(f"s_mov_b32 s{S_CH}, 0")
    a(f"s_mov_b32 s{S_LB}, 0")
    a(f"s_mov_b32 s{S_NT}, 8")
    a.label(f"{name}_maxchunk")
    for l in set_k_addr(S_LB): a(l)
    a(f"s_mov_b32 s{S_I}, 0")
    a.label(f"{name}_maxtile")
    a(f"ds_read_b128 v[{KF1}:{KF1+3}], v{V_KC}")
    a(f"ds_read_b128 v[{KF2}:{KF2+3}], v{V_KC} offset:8192")
    a(f"v_add_u32 v{V_KC}, 1024, v{V_KC}")
    a("s_waitcnt lgkmcnt(0)")
    for j in range(2):
        for l in qk(0, j, j, shift=False): a(l)
    a("s_nop 7"); a("s_nop 7")
    for j in range(2):
        d = SS + 16 * j
        for r in range(0, 16, 2):
            a(f"v_max3_f32 v{V_MX+j}, v{d+r}, v{d+r+1}, v{V_MX+j}")
    a(f"s_add_u32 s{S_I}, s{S_I}, 1")
    a(f"s_cmp_lt_u32 s{S_I}, s{S_NT}")
    a(f"s_cbranch_scc1 {name}_maxtile")
    a(f"s_add_u32 s{S_CH}, s{S_CH}, 1")
    a("s_barrier")
    a(f"s_cmp_ge_u32 s{S_CH}, 8")
    a(f"s_cbranch_scc1 {name}_maxall")
    request(f"s{S_CH}", 0)
    a("s_waitcnt vmcnt(0)")
    a("s_barrier")
    a(f"s_branch {name}_maxchunk")
    a.label(f"{name}_maxall")
    zero_state()
    request(0, 0)
    request(1, BUF)
    a("s_waitcnt vmcnt(0)")
    a("s_barrier")
    a.label(f"{name}_maxdone")
    for r in range(32): a(f"v_mov_b32 v{OO+r}, 0")
    a(f"s_cmp_eq_u32 s{S_MODE}, 0")
    a(f"s_cselect_b32 s{S_TMP}, {f2h(OFF_SHIFT)}, 0")
    for j in range(2):
        m, t0 = V_MX + j, SS
        a(f"v_mov_b32 v{t0}, v{m}")
        a("s_nop 1")
        a(f"v_permlane32_swap_b32 v{m}, v{t0}")
        a("s_nop 1")
        a(f"v_max_f32 v{m}, v{m}, v{t0}")
        a(f"v_add_f32 v{m}, s{S_TMP}, v{m}")
        a(f"v_sub_f32 v{m}, 0, v{m}")
        for r in range(16): a(f"v_mov_b32 v{CM+16*j+r}, v{m}")
    stamp_at(2)

    a(f"s_mov_b32 s{S_CH}, 0")
    a(f"s_mov_b32 s{S_LB}, 0")
    a(f"s_mov_b32 s{S_LBX}, {BUF}")
    a(f"s_mov_b32 s{S_LBN}, {2*BUF}")
    a(f"s_mov_b32 s{S_KSRC}, {2*8192}")
    a(f"s_mov_b32 s{S_VSRC}, {2*512}")
    for l in set_k_addr(S_LB) + set_v_addr(S_LB): a(l)
    for l in k_reads(0, 0): a(l)
    a("s_waitcnt lgkmcnt(0)")
    for l in qk(0, 0, 0): a(l)
    a("s_nop 7")
    a("s_nop 3")
    def unit(mf, sb, extra):
        d = SS + 16 * sb; p = PP + 8 * sb
        ex = [f"v_exp_f32 v{d+i}, v{d+i}" for i in range(16)]
        cv = [f"v_cvt_pk_bf16_f32 v{p+i}, v{d+2*i}, v{d+2*i+1}" for i in range(8)]
        seq = [ex[0:4], ex[4:8] + cv[0:2], ex[8:12] + cv[2:4], ex[12:16] + cv[4:8]]
        if "grp" in dbg:
            seq = [ex[0:3], ex[3:6], ex[6:9], ex[9:16] + cv]
            if "win" in dbg:
                seq = [ex[0:3], ex[3:6], ex[6:9], ex[9:12] + ["s_setprio 0"] + ex[12:16] + cv[0:5] + ["s_setprio 2"] + cv[5:8]]
                if "winb" in dbg: seq[3] = ex[9:11] + ["s_setprio 0"] + ex[11:16] + cv[0:7] + ["s_setprio 2"] + cv[7:8]
                if "winc" in dbg: seq[3] = ex[9:13] + ["s_setprio 0"] + ex[13:16] + cv[0:3] + ["s_setprio 2"] + cv[3:8]
        def keep(l):
            if "a_nodma" in dbg and ("buffer_load" in l or "m0" in l): return False
            if "a_nords" in dbg and (l.startswith("ds_read") or l.startswith("s_waitcnt lgkm")): return False
            if "a_nobar" in dbg and (l == "s_barrier" or l.startswith("s_waitcnt vmcnt")): return False
            return True
        for i in range(4):
            for l in extra.get(("pre", i), []):
                if keep(l): put(l)
            a(mf[i])
            for l in extra.get(i, []):
                if keep(l): put(l)
            for l in seq[i]: a(l)
    if "win" in dbg: a("s_setprio 2")
    a.label(f"{name}_chunk")
    dg = dma_groups()
    skip = a.uid(name + "_nodma")
    for kt in range(8):
        s = kt & 1
        exA = {}
        if kt == 1:
            exA[("pre", 0)] = ["s_waitcnt vmcnt(0)", "s_barrier"]
        if kt < 7:
            exA[0] = k_reads(kt + 1, s ^ 1) + v_reads(kt, s)
        else:
            exA[0] = set_k_addr(S_LBX) + k_reads(0, s ^ 1) + v_reads(kt, s)
        if 2 <= kt <= 5:
            lab = a.uid(name + "_nd")
            pieces = dg[2*(kt-2)] + (dg[2*(kt-2)+1] if 2*(kt-2)+1 < len(dg) else [])
            exA[3] = [f"s_cmp_ge_u32 s{S_CH}, 6", f"s_cbranch_scc1 {lab}"] + pieces + [f"{lab}:"]
        q1 = qk(s, 1, 1); p1 = pv(s ^ 1, 1, 1)
        unit([q1[0], q1[1], p1[0], p1[1]], 0, exA)
        exB = {("pre", 0): ["s_waitcnt lgkmcnt(0)"]}
        if kt == 7:
            exB[0] = set_v_addr(S_LBX)
            exB[2] = [f"s_add_u32 s{S_CH}, s{S_CH}, 1", f"s_mov_b32 s{S_TMP2}, s{S_LB}", f"s_mov_b32 s{S_LB}, s{S_LBX}",
                      f"s_mov_b32 s{S_LBX}, s{S_LBN}", f"s_mov_b32 s{S_LBN}, s{S_TMP2}",
                      f"s_add_u32 s{S_KSRC}, s{S_KSRC}, 8192", f"s_add_u32 s{S_VSRC}, s{S_VSRC}, 512"]
        q0 = qk(s ^ 1, 0, 0); p0 = pv(s, 0, 0)
        unit([q0[0], q0[1], p0[0], p0[1]], 1, exB)
    a(f"s_cmp_lt_u32 s{S_CH}, 8")
    a(f"s_cbranch_scc1 {name}_chunk")
    for l in pv(1, 1, 1): a(l)
    if "win" in dbg: a("s_setprio 0")
    stamp_at(3)
    a("s_nop 7"); a("s_nop 7")
    RINV = SS
    ZZ = SS + 8
    a(f"v_mov_b32 v{ZZ}, 0")
    a(f"v_mov_b32 v{ZZ+1}, {f2h(2.0**100)}")
    a(f"v_mov_b32 v{ZZ+2}, 0x7fc00000")
    for j in range(2):
        o = OO + 16 * j
        l0, l1 = RINV + 2 * j, RINV + 2 * j + 1
        a(f"v_mov_b32 v{l0}, v{o+10}")
        a(f"v_mov_b32 v{l1}, v{o+10}")
        a("s_nop 1")
        a(f"v_permlane32_swap_b32 v{l0}, v{l1}")
        a("s_nop 1")
        a(f"v_cmp_nlt_f32 vcc, v{l0}, v{ZZ+1}")
        a(f"v_rcp_f32 v{l0}, v{l0}")
        a("s_nop 0")
        a(f"v_cndmask_b32 v{ZZ}, v{ZZ}, v{ZZ+2}, vcc")
        for r in range(10):
            a(f"v_mul_f32 v{o+r}, v{o+r}, v{l0}")
        for r in range(8):
            a(f"v_fma_f32 v{ZZ}, v{o+r}, 0, v{ZZ}")
    a(f"v_cmp_u_f32 vcc, v{ZZ}, v{ZZ}")
    a("s_nop 3")
    BAD = "vcc"
    a(f"s_cmp_lg_u64 vcc, 0")
    a(f"s_cselect_b32 s{S_TMP}, 1, 0")
    a(f"s_cmp_eq_u32 s{S_MODE}, 1")
    a(f"s_cselect_b32 s{S_TMP}, 0, s{S_TMP}")
    if "force1" in dbg:
        a(f"s_xor_b32 s{S_TMP}, s{S_MODE}, 1")
    a(f"v_mov_b32 v{V_T0}, s{S_TMP}")
    a(f"s_lshl_b32 s{S_TMP2}, s{S_WAVE}, 2")
    a(f"s_add_u32 s{S_TMP2}, s{S_TMP2}, {LDS_FLAG}")
    a(f"v_mov_b32 v{V_T1}, s{S_TMP2}")
    a(f"ds_write_b32 v{V_T1}, v{V_T0}")
    a("s_waitcnt lgkmcnt(0)")
    a("s_barrier")
    a(f"v_mov_b32 v{V_T1}, {LDS_FLAG}")
    a(f"ds_read_b128 v[{SS+12}:{SS+15}], v{V_T1}")
    a("s_waitcnt lgkmcnt(0)")
    a(f"v_or_b32 v{SS+12}, v{SS+12}, v{SS+13}")
    a(f"v_or3_b32 v{SS+12}, v{SS+12}, v{SS+14}, v{SS+15}")
    a("s_nop 0")
    a(f"v_readfirstlane_b32 s{S_TMP}, v{SS+12}")
    a("s_nop 3")
    a(f"s_cmp_eq_u32 s{S_TMP}, 0")
    a(f"s_cbranch_scc1 {name}_store")
    a(f"s_mov_b32 s{S_MODE}, 1")
    a("s_barrier")
    request(0, 0)
    a("s_waitcnt vmcnt(0)")
    a("s_barrier")
    a(f"s_branch {name}_maxpass")
    a.label(f"{name}_store")
    for j in range(2):
        o = OO + 16 * j
        a(f"s_lshr_b32 s{S_TMP}, s{S_Q0}, 5")
        a(f"s_add_u32 s{S_TMP}, s{S_TMP}, {j}")
        a(f"s_mul_i32 s{S_TMP}, s{S_TMP}, 49152")
        for w in range(5):
            a(f"v_cvt_pk_bf16_f32 v{o+w}, v{o+2*w}, v{o+2*w+1}")
        for w in range(5, 8): a(f"v_mov_b32 v{o+w}, 0")
        a(f"buffer_store_dwordx4 v[{o}:{o+3}], v{AD}, s[{SRD_O}:{SRD_O+3}], s{S_TMP} offen sc0 sc1")
        a(f"buffer_store_dwordx4 v[{o+4}:{o+7}], v{AD+1}, s[{SRD_O}:{SRD_O+3}], s{S_TMP} offen sc0 sc1")
    stamp_at(4)
    stamp_at(5)
    if stamp:
        a(f"s_memrealtime s[{S_ST+12+2}:{S_ST+12+3}]")
        emit_stamp_store(a, S_ST, 8)
```

```python
from lib import *
from k1 import f2h, LOG2E, perm_pi, dma_lane_offset128, emit_stamp_store

WO_BYTES = 576 * 128
LDS_BYTES = WO_BYTES + 1024
LAUNCH = ("k3_kernel", 288, 256, LDS_BYTES)

S_WAVE, S_TB, S_CT = 3, 14, 15
SRD_W, SRD_O, SRD_G, SRD_X, SRD_OUT, SRD_F = 16, 20, 24, 28, 32, 36
S_TMP, S_TMP2, S_OFF, S_CG, S_WK, S_TASK = 40, 41, 42, 43, 44, 45
S_ST = 60
V_LANE, V_N, V_HI, V_T0, V_T1, V_T2, V_DL, V_L16, V_XA, V_FA = 1, 2, 3, 4, 5, 6, 8, 9, 10, 11
OB = 16
ACC = 112
WR = 144
GB = 168
XB = 208
Y = 216
V_LB = 232
E, P = WR, OB + 16
NVGPR = 240

def gen_k3(name="k3_kernel", stamp=False, dbg=""):
    a = Asm()
    kernel_header(a, name)
    END = name + "_end"
    a("s_cmp_ge_u32 s2, 288")
    a(f"s_cbranch_scc1 {END}")
    final_pre(a, name, stamp, dbg, "s2", fused=False)
    final_post(a, name, stamp, dbg, fused=False)
    a.label(END)
    a("s_endpgm")
    return a.text() + kernel_descriptor(name, NVGPR, NVGPR)

def final_pre(a, name, stamp, dbg, task, fused):
    if fused and stamp: a("s_memtime s[62:63]")
    a(f"s_mov_b32 s{S_TASK}, {task}")
    if fused:
        for d, src in ((4, 76), (6, 78), (8, 80), (10, 82)):
            a(f"s_mov_b64 s[{d}:{d+1}], s[{src}:{src+1}]")
    else:
        a("s_load_dwordx2 s[4:5], s[0:1], 0")
        a("s_load_dwordx2 s[6:7], s[0:1], 16")
        a("s_load_dwordx2 s[8:9], s[0:1], 56")
        a("s_load_dwordx2 s[10:11], s[0:1], 72")
    if not fused:
        if stamp:
            a(f"s_memtime s[{S_ST}:{S_ST+1}]")
            a(f"s_memrealtime s[{S_ST+12}:{S_ST+13}]")
        a("v_lshrrev_b32 v1, 6, v0")
        a("s_nop 0")
        a(f"v_readfirstlane_b32 s{S_WAVE}, v1")
    a(f"s_and_b32 s{S_TMP}, s{S_TASK}, 7")
    a(f"s_lshr_b32 s{S_TMP2}, s{S_TASK}, 3")
    a(f"s_and_b32 s{S_TB}, s{S_TMP2}, 3")
    a(f"s_lshl_b32 s{S_TMP}, s{S_TMP}, 2")
    a(f"s_add_u32 s{S_TB}, s{S_TB}, s{S_TMP}")
    a(f"s_lshr_b32 s{S_CG}, s{S_TMP2}, 2")
    a(f"s_lshl_b32 s{S_TB}, s{S_TB}, 1")
    a(f"s_lshr_b32 s{S_TMP}, s{S_WAVE}, 1")
    a(f"s_add_u32 s{S_TB}, s{S_TB}, s{S_TMP}")
    a(f"s_and_b32 s{S_WK}, s{S_WAVE}, 1")
    a(f"s_lshl_b32 s{S_CT}, s{S_CG}, 1")
    a(f"s_add_u32 s{S_CT}, s{S_CT}, s{S_WK}")
    a(f"v_and_b32 v{V_LANE}, 63, v0")
    a("s_waitcnt lgkmcnt(0)")
    make_srd(a, SRD_W, 6, 7, 0, 576 * 1152)
    make_srd(a, SRD_O, 10, 11, WS_O, SZ_O)
    make_srd(a, SRD_G, 10, 11, WS_G, NSPLIT * SZ_G1)
    make_srd(a, SRD_X, 4, 5, 0, 2048 * 1152)
    make_srd(a, SRD_OUT, 8, 9, 0, 2048 * 1152)
    make_srd(a, SRD_F, 10, 11, WS_F, SZ_F)
    a(f"v_lshlrev_b32 v{V_L16}, 4, v{V_LANE}")
    a(f"s_movk_i32 s{S_TMP}, 1152")
    dma_lane_offset128(a, V_DL, V_LANE, S_TMP, V_T0, V_T1)
    a(f"s_mul_i32 s{S_OFF}, s{S_WAVE}, {18*8*1152}")
    a(f"s_lshl_b32 s{S_TMP}, s{S_CG}, 7")
    a(f"s_add_u32 s{S_OFF}, s{S_OFF}, s{S_TMP}")
    a(f"s_mul_i32 s{S_TMP}, s{S_WAVE}, {18*1024}")
    a(f"s_mov_b32 m0, s{S_TMP}")
    for j in range(18):
        a("s_nop 0")
        a(f"buffer_load_dwordx4 v{V_DL}, s[{SRD_W}:{SRD_W+3}], s{S_OFF} offen lds")
        if j < 17:
            a(f"s_add_u32 s{S_OFF}, s{S_OFF}, {8*1152}")
            a("s_add_u32 m0, m0, 1024")
    for r in range(4): a(f"v_mov_b32 v{Y+r}, 0")
    a(f"v_add_u32 v{V_T0}, {WO_BYTES}, v{V_L16}")
    a(f"ds_write_b128 v{V_T0}, v[{Y}:{Y+3}]")
    a(f"v_and_b32 v{V_N}, 31, v{V_LANE}")
    a(f"v_lshrrev_b32 v{V_HI}, 5, v{V_LANE}")
    perm_pi(a, V_T0, V_N, V_T1)
    a(f"s_lshl_b32 s{S_TMP}, s{S_TB}, 5")
    a(f"v_add_u32 v{V_T0}, s{S_TMP}, v{V_T0}")
    a(f"s_movk_i32 s{S_TMP}, 1152")
    a(f"v_mul_lo_u32 v{V_XA}, v{V_T0}, s{S_TMP}")
    a(f"v_lshl_add_u32 v{V_XA}, v{V_HI}, 4, v{V_XA}")
    a(f"s_lshl_b32 s{S_TMP}, s{S_CT}, 6")
    a(f"v_add_u32 v{V_XA}, s{S_TMP}, v{V_XA}")
    a(f"buffer_load_dwordx4 v[{XB}:{XB+3}], v{V_XA}, s[{SRD_X}:{SRD_X+3}], 0 offen")
    a(f"buffer_load_dwordx4 v[{XB+4}:{XB+7}], v{V_XA}, s[{SRD_X}:{SRD_X+3}], 0 offen offset:32")
    a(f"v_bfe_u32 v{V_T2}, v{V_LANE}, 4, 1")
    a(f"v_lshlrev_b32 v{V_T2}, 5, v{V_T2}")
    a(f"v_and_b32 v{V_T0}, 1, v{V_LANE}")
    a(f"v_lshl_add_u32 v{V_T2}, v{V_T0}, 4, v{V_T2}")
    a(f"v_bfe_u32 v{V_T0}, v{V_LANE}, 1, 1")
    a(f"v_lshl_add_u32 v{V_T2}, v{V_T0}, 3, v{V_T2}")
    a(f"s_mul_i32 s{S_TMP}, s{S_WK}, {8*36*128}")
    a(f"v_add_u32 v{V_T2}, s{S_TMP}, v{V_T2}")
    for j, (r0, r1) in enumerate(((0, 8), (16, 18), (26, 34))):
        a(f"v_mul_u32_u24 v{V_T0}, {r1 - r0}, v{V_HI}")
        a(f"v_bfe_u32 v{V_T1}, v{V_LANE}, 2, 2")
        a(f"v_add3_u32 v{V_T0}, v{V_T0}, v{V_T1}, {r0}")
        a(f"v_bfe_u32 v{V_T1}, v{V_T0}, 1, 1")
        a(f"v_lshl_add_u32 v{V_T1}, v{V_T1}, 6, v{V_T2}")
        a(f"v_lshl_add_u32 v{V_LB+2*j}, v{V_T0}, 7, v{V_T1}")
        a(f"v_xor_b32 v{V_LB+2*j+1}, 64, v{V_LB+2*j}")
    return 20

def final_post(a, name, stamp, dbg, fused, late=False, D=6):
    LDF = " sc1" if fused else ""
    def stamp_at(i):
        if stamp: a(f"s_memtime s[{S_ST+2*i}:{S_ST+2*i+1}]")
    def wait_flags(lane_mask_imm, addr_setup):
        lp, ld = a.uid(name + "_poll"), a.uid(name + "_polled")
        a(f"s_cmp_eq_u32 s{S_WAVE}, 0")
        a(f"s_cbranch_scc0 {ld}")
        addr_setup()
        a(f"s_mov_b32 s46, {hex(lane_mask_imm & 0xffffffff)}")
        a(f"s_mov_b32 s47, {hex(lane_mask_imm >> 32)}")
        a(f"v_mov_b32 v{V_T1}, 0x7fffffff")
        a(f"v_cndmask_b32 v{V_FA}, v{V_T1}, v{V_FA}, s[46:47]")
        a.label(lp)
        a(f"buffer_load_dword v{V_T0}, v{V_FA}, s[{SRD_F}:{SRD_F+3}], 0 offen sc1")
        a("s_waitcnt vmcnt(0)")
        a(f"v_cmp_ne_u32 vcc, 0, v{V_T0}")
        a("s_nop 3")
        a("s_and_b64 vcc, vcc, s[46:47]")
        a("s_cmp_eq_u64 vcc, s[46:47]")
        a(f"s_cbranch_scc1 {ld}")
        a("s_sleep 2")
        a(f"s_branch {lp}")
        a.label(ld)
        a("s_barrier")
    def g_addr(dst, lane):
        a(f"s_and_b32 s{S_TMP}, s{S_TB}, -2")
        a(f"s_mul_i32 s{S_TMP}, s{S_TMP}, 3")
        a(f"s_mul_i32 s{S_TMP2}, s{S_CG}, 43")
        a(f"s_lshr_b32 s{S_TMP2}, s{S_TMP2}, 7")
        a(f"s_add_u32 s{S_TMP}, s{S_TMP}, s{S_TMP2}")
        a(f"s_lshl_b32 s{S_TMP}, s{S_TMP}, 5")
        a(f"s_add_u32 s{S_TMP}, s{S_TMP}, {FLAG_G}")
        a(f"v_and_b32 v{dst}, 7, v{lane}")
        a(f"v_lshrrev_b32 v{V_T0}, 3, v{lane}")
        a(f"v_mul_u32_u24 v{V_T0}, 24, v{V_T0}")
        a(f"v_add_u32 v{dst}, v{dst}, v{V_T0}")
        a(f"v_lshl_add_u32 v{dst}, v{dst}, 2, s{S_TMP}")
    def a_addr(dst):
        a(f"s_lshr_b32 s{S_TMP}, s{S_TB}, 1")
        a(f"s_lshl_b32 s{S_TMP}, s{S_TMP}, 7")
        a(f"v_lshl_add_u32 v{dst}, v{V_LANE}, 2, s{S_TMP}")
    GMASK = ((1 << NSPLIT) - 1) * 0x101
    if late:
        def both():
            a(f"v_and_b32 v{V_T1}, 31, v{V_LANE}")
            g_addr(V_T2, V_T1)
            a_addr(V_FA)
            a(f"v_cmp_gt_u32 vcc, 32, v{V_LANE}")
            a("s_nop 1")
            a(f"v_cndmask_b32 v{V_FA}, v{V_T2}, v{V_FA}, vcc")
        a("s_waitcnt vmcnt(0) lgkmcnt(0)")
        wait_flags(0xffffffff | (GMASK << 32), both)
        stamp_at(2)
    elif fused:
        wait_flags(GMASK, lambda: g_addr(V_FA, V_LANE))
        stamp_at(2)
    a(f"s_mul_i32 s{S_TMP}, s{S_TB}, 18")
    a(f"s_add_u32 s{S_TMP}, s{S_TMP}, s{S_CT}")
    a(f"s_lshl_b32 s{S_OFF}, s{S_TMP}, 11")
    for s in range(NSPLIT):
        for q in range(2):
            a(f"buffer_load_dwordx4 v[{GB+8*s+4*q}:{GB+8*s+4*q+3}], v{V_L16}, s[{SRD_G}:{SRD_G+3}], s{S_OFF} offen offset:{q*1024}{LDF}")
        if s < NSPLIT - 1: a(f"s_add_u32 s{S_OFF}, s{S_OFF}, {SZ_G1}")
    C2 = 1.0 / (LOG2E * LOG2E)
    SG, XF, T0, T1 = GB, GB + 16, 238, 239
    gate = []
    for s in range(NSPLIT):
        for q in range(8):
            g = GB + 8 * s + q
            if s == 0:
                gate += [f"v_lshlrev_b32 v{Y+2*q}, 16, v{g}", f"v_and_b32 v{Y+2*q+1}, 0xffff0000, v{g}"]
            else:
                gate += [f"v_lshlrev_b32 v{T0}, 16, v{g}", f"v_and_b32 v{T1}, 0xffff0000, v{g}",
                         f"v_add_f32 v{Y+2*q}, v{Y+2*q}, v{T0}", f"v_add_f32 v{Y+2*q+1}, v{Y+2*q+1}, v{T1}"]
    for r in range(16):
        gate += [f"v_mul_f32 v{Y+r}, s50, v{Y+r}", f"v_mul_f32 v{SG+r}, s51, v{Y+r}"]
    gate += [f"v_exp_f32 v{SG+r}, v{SG+r}" for r in range(16)]
    gate += [f"v_add_f32 v{SG+r}, 1.0, v{SG+r}" for r in range(16)]
    gate += [f"v_rcp_f32 v{SG+r}, v{SG+r}" for r in range(16)]
    for r in range(16):
        d = r // 2
        gate.append(f"v_lshlrev_b32 v{XF+r}, 16, v{XB+d}" if r % 2 == 0 else f"v_and_b32 v{XF+r}, 0xffff0000, v{XB+d}")
    gate += [f"v_mul_f32 v{Y+r}, v{Y+r}, v{SG+r}" for r in range(16)]
    a(f"s_mov_b32 s50, {f2h(C2)}")
    a(f"s_mov_b32 s51, {f2h(-LOG2E)}")
    if not late:
        a("s_waitcnt vmcnt(0) lgkmcnt(0)")
        for l in gate: a(l)
        if fused:
            wait_flags(0xffffffff, lambda: a_addr(V_FA))
            stamp_at(3)
        else:
            a("s_barrier")
            stamp_at(1)
    else:
        stamp_at(3)
    NUP = 8
    a(f"s_mul_i32 s{S_TMP2}, s{S_TB}, 49152")
    a(f"s_mul_i32 s{S_TMP}, s{S_WK}, 24576")
    a(f"s_add_u32 s{S_TMP2}, s{S_TMP2}, s{S_TMP}")
    def o_load(ks):
        L = []
        if ks % 4 == 0 and ks > 0: L.append(f"s_add_u32 s{S_TMP2}, s{S_TMP2}, 4096")
        L.append(f"buffer_load_dwordx4 v[{OB+4*ks}:{OB+4*ks+3}], v{V_L16}, s[{SRD_O}:{SRD_O+3}], s{S_TMP2} offen offset:{(ks%4)*1024}{LDF}")
        return L
    for ks in range(NUP):
        for l in o_load(ks): a(l)
    def reads(i):
        r = WR + 4 * (i % D)
        k, t = i >> 1, i & 1
        m, j = divmod(k, 3)
        return [f"ds_read_b64_tr_b16 v[{r}:{r+1}], v{V_LB+2*j+t} offset:{m*4608}",
                f"ds_read_b64_tr_b16 v[{r+2}:{r+3}], v{V_LB+2*j+t} offset:{m*4608+512}"]
    for i in range(D):
        for l in reads(i): a(l)
    groups = []
    for i in range(48):
        k, t = i >> 1, i & 1
        g = []
        if t == 0: g.append(f"s_waitcnt vmcnt({min(24, NUP + k) - (k + 1)})")
        if i % 2 == 0: g.append(f"s_waitcnt lgkmcnt({2 * (min(i + D - 1, 47) - (i + 1))})")
        r = WR + 4 * (i % D); acc = ACC + 16 * t
        c = "0" if k == 0 else f"v[{acc}:{acc+15}]"
        g.append(f"v_mfma_f32_32x32x16_bf16 v[{acc}:{acc+15}], v[{r}:{r+3}], v[{OB+4*k}:{OB+4*k+3}], {c}")
        if i + D < 48: g += reads(i + D)
        if t == 0 and k + NUP < 24: g += o_load(k + NUP)
        groups.append(g)
    for l in interleave(groups, gate if late else [], start=0, end=46): a(l)
    if fused: stamp_at(4)
    else: stamp_at(2)
    a("s_barrier")
    a(f"s_lshl_b32 s{S_TMP}, s{S_WAVE}, 12")
    a(f"v_add_u32 v{V_T0}, s{S_TMP}, v{V_L16}")
    lk, lj = a.uid(name + "_k"), a.uid(name + "_j")
    a("s_nop 7")
    a(f"s_cmp_eq_u32 s{S_WK}, 0")
    a(f"s_cbranch_scc1 {lk}")
    for q in range(4): a(f"ds_write_b128 v{V_T0}, v[{ACC+4*q}:{ACC+4*q+3}] offset:{q*1024}")
    a("s_waitcnt lgkmcnt(0)")
    for r in range(16): a(f"v_mov_b32 v{ACC+r}, v{ACC+16+r}")
    a(f"s_branch {lj}")
    a.label(lk)
    for q in range(4): a(f"ds_write_b128 v{V_T0}, v[{ACC+16+4*q}:{ACC+16+4*q+3}] offset:{q*1024}")
    a.label(lj)
    a("s_waitcnt lgkmcnt(0)")
    a("s_barrier")
    a(f"s_xor_b32 s{S_TMP}, s{S_WAVE}, 1")
    a(f"s_lshl_b32 s{S_TMP}, s{S_TMP}, 12")
    a(f"v_add_u32 v{V_T0}, s{S_TMP}, v{V_L16}")
    for q in range(4): a(f"ds_read_b128 v[{P+4*q}:{P+4*q+3}], v{V_T0} offset:{q*1024}")
    a("s_waitcnt lgkmcnt(0)")
    for r in range(16): a(f"v_add_f32 v{ACC+r}, v{ACC+r}, v{P+r}")
    if not fused: stamp_at(3)
    for r in range(16): a(f"v_fma_f32 v{Y+r}, v{Y+r}, v{ACC+r}, v{XF+r}")
    for r in range(8): a(f"v_cvt_pk_bf16_f32 v{Y+r}, v{Y+2*r}, v{Y+2*r+1}")
    OST = " sc0 sc1" if "owt" in dbg else (" nt" if "ont" in dbg else "")
    a(f"buffer_store_dwordx4 v[{Y}:{Y+3}], v{V_XA}, s[{SRD_OUT}:{SRD_OUT+3}], 0 offen{OST}")
    a(f"buffer_store_dwordx4 v[{Y+4}:{Y+7}], v{V_XA}, s[{SRD_OUT}:{SRD_OUT+3}], 0 offen offset:32{OST}")
    if stamp:
        if fused:
            stamp_at(5)
            a("s_mov_b32 s12, s10")
            a("s_mov_b32 s13, s11")
        else:
            stamp_at(4); stamp_at(5)
        a(f"s_memrealtime s[{S_ST+14}:{S_ST+15}]")
        emit_stamp_store(a, S_ST, 8)
```
